```python
import torch

def _softmax(x, axis=-1):
    return torch.softmax(x, dim=axis)
def _gelu(x):
    return torch.nn.functional.gelu(x, approximate="tanh")
def _silu(x):
    return torch.nn.functional.silu(x)
def _sigmoid(x):
    return torch.sigmoid(x)
def _layernorm(x, axis=-1, eps=1e-5):
    m = x.mean(dim=axis, keepdim=True)
    v = x.var(dim=axis, keepdim=True, unbiased=False)
    return (x - m) / torch.sqrt(v + eps)
def _scatter_add(tgt, idx, src, axis=0):
    return tgt.clone().index_add_(axis, idx, src)
def _segment_sum(src, seg, n):
    out = torch.zeros((n,) + src.shape[1:], dtype=src.dtype)
    return out.index_add_(0, seg, src)
def _pad(x, pw):
    flat = tuple(v for pair in reversed(pw) for v in pair)
    return torch.nn.functional.pad(x, flat)

kernel_name = 'interleave_layers__linear_kernel_hedgehog__geglu_ffn__prompt'

def setup_inputs():

    _w = (lambda a: (lambda t: t.to(torch.bfloat16) if t.is_floating_point() else t)(torch.as_tensor(a)))
    def _A_setup():
        B, S, D, H = 1, 2048, 640, 32
        Dh = D // H
        return {
            "x": _w((lambda *s: torch.randn(*s, dtype=torch.bfloat16) * 0.05)(B, S, D)),
            "wqkv": _w((lambda *s: torch.randn(*s, dtype=torch.bfloat16) * 0.2)(D, 3 * D)),
            "w_phi": _w((lambda *s: torch.randn(*s, dtype=torch.bfloat16) * 0.2)(H, Dh, Dh) * (Dh ** -0.5)),
            "wo": _w((lambda *s: torch.randn(*s, dtype=torch.bfloat16) * 0.05)(D, D)),
        }
    _A_in = _A_setup()

    def _B_setup():
        B, S, D, F = 1, 2048, 640, 1728
        return {
            "x": _w((lambda *s: torch.randn(*s, dtype=torch.bfloat16) * 0.05)(B, S, D)),
            "w_gate": _w((lambda *s: torch.randn(*s, dtype=torch.bfloat16) * 0.05)(D, F)),
            "w_up": _w((lambda *s: torch.randn(*s, dtype=torch.bfloat16) * 0.05)(D, F)),
            "w_down": _w((lambda *s: torch.randn(*s, dtype=torch.bfloat16) * 0.05)(F, D)),
        }
    _B_in = _B_setup()

    return {
        "A_x": _A_in["x"],
        "A_wqkv": _A_in["wqkv"],
        "A_w_phi": _A_in["w_phi"],
        "A_wo": _A_in["wo"],
        "B_x": _B_in["x"],
        "B_w_gate": _B_in["w_gate"],
        "B_w_up": _B_in["w_up"],
        "B_w_down": _B_in["w_down"],
    }

def reference(A_x, A_wqkv, A_w_phi, A_wo, B_x, B_w_gate, B_w_up, B_w_down):
    def _A_ref(x, wqkv, w_phi, wo):
        B, S, D = x.shape
        H = 32; Dh = D // H
        qkv = (lambda x, *d: x.permute(*d))((x @ wqkv).reshape(B, S, 3, H, Dh), 2, 0, 3, 1, 4)
        q, k, v = qkv[0], qkv[1], qkv[2]
        pq = torch.einsum("bhsd,hdf->bhsf", q, w_phi)
        pk = torch.einsum("bhsd,hdf->bhsf", k, w_phi)
        phi_q = torch.concatenate([_softmax(pq, axis=-1), _softmax(-pq, axis=-1)], axis=-1)
        phi_k = torch.concatenate([_softmax(pk, axis=-1), _softmax(-pk, axis=-1)], axis=-1)
        kv = torch.einsum("bhsf,bhsd->bhfd", phi_k, v)
        z  = torch.einsum("bhsf->bhf", phi_k)
        num = torch.einsum("bhqf,bhfd->bhqd", phi_q, kv)
        den = torch.einsum("bhqf,bhf->bhq", phi_q, z)[..., None] + 1e-6
        o = num / den
        return (lambda x, *d: x.permute(*d))(o, 0, 2, 1, 3).reshape(B, S, D) @ wo

    def _B_ref(x, w_gate, w_up, w_down):
        return (_gelu(x @ w_gate) * (x @ w_up)) @ w_down

    x = A_x
    x = x + _A_ref(_layernorm(x, axis=-1), A_wqkv, A_w_phi, A_wo)
    x = x + _B_ref(_layernorm(x, axis=-1), B_w_gate, B_w_up, B_w_down)
    x = x + _A_ref(_layernorm(x, axis=-1), A_wqkv, A_w_phi, A_wo)
    x = x + _B_ref(_layernorm(x, axis=-1), B_w_gate, B_w_up, B_w_down)
    return x
```

```python
import re

REG = re.compile(r'(?<![\w.])(-|abs\()?([vas])(?:(\d+)|\[(\d+):(\d+)\])')

def regs_of(tok):
    out = []
    for m in REG.finditer(tok):
        k = m.group(2)
        if m.group(3) is not None:
            out.append((k, int(m.group(3))))
        else:
            out += [(k, i) for i in range(int(m.group(4)), int(m.group(5)) + 1)]
    if re.search(r'\bvcc\b', tok): out.append(('x', 'vcc'))
    if re.search(r'\bexec(_lo|_hi)?\b', tok): out.append(('x', 'exec'))
    if re.search(r'\bm0\b', tok): out.append(('x', 'm0'))
    return out

TRANS = ('v_exp_f32', 'v_log_f32', 'v_rcp_f32', 'v_rsq_f32', 'v_sqrt_f32', 'v_sin_f32', 'v_cos_f32')

class I:
    __slots__ = ('text', 'mn', 'kind', 'defs', 'uses', 'passes', 'srcc', 'srcab', 'wide', 'tag', 'data')
    def __init__(self, text, tag=None):
        self.text = text.strip()
        self.tag = tag
        self.passes = 0; self.srcc = []; self.srcab = []; self.wide = False; self.data = []
        t = self.text.split(';')[0].strip()
        if t.endswith(':'):
            self.mn = t; self.kind = 'label'; self.defs = []; self.uses = []; return
        sp = t.split(None, 1)
        mn = sp[0]; self.mn = mn
        rest = sp[1] if len(sp) > 1 else ''
        ops = [o.strip() for o in rest.split(',')] if rest else []
        R = [regs_of(o) for o in ops]
        flat = lambda l: [x for y in l for x in y]
        d = []; u = []
        if mn.startswith('v_mfma'):
            self.kind = 'mfma'
            self.passes = 8 if '32x32' in mn else 4
            d = R[0]; self.srcab = R[1] + R[2]; self.srcc = R[3]; u = self.srcab + self.srcc
        elif mn.startswith('buffer_load') or mn.startswith('global_load'):
            if re.search(r'\blds\b', t) or '_lds_' in mn:
                self.kind = 'dma'; u = flat(R) + [('x', 'm0')]
            else:
                self.kind = 'vload'; d = R[0]; u = flat(R[1:])
        elif mn.startswith('buffer_store'):
            self.kind = 'vstore'; u = flat(R); self.data = R[0]
            self.wide = mn.endswith('x3') or mn.endswith('x4')
        elif mn.startswith('global_store'):
            self.kind = 'vstore'; u = flat(R); self.data = R[1]
            self.wide = mn.endswith('x3') or mn.endswith('x4')
        elif mn.startswith('buffer_atomic') or mn.startswith('global_atomic'):
            if re.search(r'\bsc0\b', t):
                self.kind = 'vload'; d = R[0]; u = flat(R)
            else:
                self.kind = 'vstore'; u = flat(R)
        elif mn.startswith('buffer_inv') or mn.startswith('buffer_wbl2'):
            self.kind = 'vstore'
        elif mn.startswith('ds_read') or mn.startswith('ds_bpermute') or mn.startswith('ds_swizzle'):
            self.kind = 'dsread'; d = R[0]; u = flat(R[1:])
        elif mn.startswith('ds_write'):
            self.kind = 'dswrite'; u = flat(R)
        elif mn.startswith('s_load') or mn.startswith('s_memtime') or mn.startswith('s_memrealtime'):
            self.kind = 'smem'; d = R[0]; u = flat(R[1:])
        elif mn == 's_waitcnt': self.kind = 'wait'
        elif mn == 's_barrier': self.kind = 'barrier'
        elif mn == 's_nop': self.kind = 'nop'
        elif mn.startswith('s_cbranch') or mn == 's_branch' or mn == 's_endpgm' or mn.startswith('s_setpc'):
            self.kind = 'branch'
            if 'vcc' in mn: u = [('x', 'vcc')]
            if 'exec' in mn: u = [('x', 'exec')]
        elif mn.startswith('s_cmp') or mn in ('s_setprio', 's_sleep'):
            self.kind = 'salu'; u = flat(R)
        elif mn.startswith('s_'):
            self.kind = 'salu'; d = R[0] if R else []; u = flat(R[1:])
            if 'saveexec' in mn: d = d + [('x', 'exec')]
            if mn.startswith('s_addk') or mn.startswith('s_mulk'): u = u + d
        elif mn.startswith('v_'):
            self.kind = 'trans' if mn.replace('_e32', '').replace('_e64', '') in TRANS else 'valu'
            if mn.startswith('v_permlane') and 'swap' in mn:
                d = R[0] + R[1]; u = R[0] + R[1]
            elif mn.startswith('v_add_co') or mn.startswith('v_sub_co') or mn.startswith('v_addc_co'):
                d = R[0] + R[1]; u = flat(R[2:])
            else:
                d = R[0]; u = flat(R[1:])
                if mn.startswith('v_fmac') or mn.startswith('v_dot2c') or 'dpp' in t or 'row_' in t or 'quad_perm' in t:
                    u = u + d
        else:
            raise ValueError('unparsed: ' + text)
        self.defs = d; self.uses = u
    def is_valu(self): return self.kind in ('valu', 'trans')
    def is_dpp(self): return ('row_' in self.text or 'quad_perm' in self.text) and self.is_valu()
    def __repr__(self): return self.text

class Wait:
    def __init__(self, kind, tags): self.kind = kind; self.tags = tags if isinstance(tags, (list, tuple, set)) else [tags]

class Reset:
    pass

class Code:
    def __init__(self):
        self.items = []
    def __call__(self, text, tag=None):
        for line in text.split('\n'):
            line = line.strip()
            if not line or line.startswith(';'): continue
            self.items.append(I(line, tag))
        return self
    def add(self, it):
        if isinstance(it, (list, tuple)): self.items += list(it)
        elif isinstance(it, Code): self.items += it.items
        else: self.items.append(it)
    def wait_vm(self, tags): self.items.append(Wait('vm', tags))
    def wait_lg(self, tags): self.items.append(Wait('lg', tags))

def overlap(a, b):
    return bool(set(a) & set(b))

def insert_waits(items):
    out = []; vm = []; lg = []
    def emit(nvm, nlg):
        parts = []
        if nvm is not None: parts.append('vmcnt(%d)' % nvm)
        if nlg is not None: parts.append('lgkmcnt(%d)' % nlg)
        if out and isinstance(out[-1], I) and out[-1].kind == 'wait':
            prev = out.pop()
            m = re.search(r'vmcnt\((\d+)\)', prev.text)
            if m: nvm = int(m.group(1)) if nvm is None else min(nvm, int(m.group(1)))
            m = re.search(r'lgkmcnt\((\d+)\)', prev.text)
            if m: nlg = int(m.group(1)) if nlg is None else min(nlg, int(m.group(1)))
            parts = []
            if nvm is not None: parts.append('vmcnt(%d)' % nvm)
            if nlg is not None: parts.append('lgkmcnt(%d)' % nlg)
        out.append(I('s_waitcnt ' + ' '.join(parts)))
    def need(q, pred):
        idx = -1
        for i, o in enumerate(q):
            if pred(o): idx = i
        return idx
    for it in items:
        if isinstance(it, Reset):
            vm = []; lg = []; continue
        if isinstance(it, Wait):
            q = vm if it.kind == 'vm' else lg
            idx = need(q, lambda o: o.tag in it.tags)
            if idx >= 0:
                n = len(q) - 1 - idx
                if it.kind == 'vm':
                    emit(n, None); vm = vm[idx + 1:]
                else:
                    if any(o.kind == 'smem' for o in lg): n = 0; idx = len(q) - 1
                    n = min(n, 15); emit(None, n); lg = lg[len(lg) - n:] if n else []
            continue
        if it.kind == 'wait':
            m = re.search(r'vmcnt\((\d+)\)', it.text)
            if m:
                n = int(m.group(1)); vm = vm[len(vm) - n:] if 0 < n < len(vm) else ([] if n == 0 else vm)
            m = re.search(r'lgkmcnt\((\d+)\)', it.text)
            if m:
                n = int(m.group(1)); lg = lg[len(lg) - n:] if 0 < n < len(lg) else ([] if n == 0 else lg)
            out.append(it); continue
        touch = set(it.defs) | set(it.uses)
        nvm = nlg = None
        idx = need(vm, lambda o: bool(touch & set(o.defs)))
        if idx >= 0: nvm = len(vm) - 1 - idx; vm = vm[idx + 1:]
        idx = need(lg, lambda o: bool(touch & set(o.defs)))
        if idx >= 0:
            nlg = len(lg) - 1 - idx
            if any(o.kind == 'smem' for o in lg): nlg = 0
            nlg = min(nlg, 15); lg = lg[len(lg) - nlg:] if nlg else []
        if it.kind in ('vload', 'vstore', 'dma') and len(vm) >= 63:
            n = 62 if nvm is None else min(nvm, 62); nvm = n; vm = vm[len(vm) - n:]
        if it.kind in ('dsread', 'dswrite') and len(lg) >= 15:
            if any(o.kind == 'smem' for o in lg): n = 0
            else: n = 14 if nlg is None else min(nlg, 14)
            nlg = n; lg = lg[len(lg) - n:] if n else []
        if nvm is not None or nlg is not None: emit(nvm, nlg)
        out.append(it)
        if it.kind in ('vload', 'vstore', 'dma'): vm.append(it)
        if it.kind in ('dsread', 'dswrite', 'smem'): lg.append(it)
    return out

def states(it):
    if it.kind == 'label': return 0
    if it.kind == 'nop': return int(it.text.split()[1], 0) + 1
    return 1

def required(p, c):
    n = 0
    pv = [r for r in p.defs if r[0] in 'va']
    ps = [r for r in p.defs if r[0] == 's' or r == ('x', 'vcc')]
    if p.is_valu():
        if c.kind == 'mfma' and overlap(pv, c.uses): n = max(n, 2)
        if c.mn.startswith('v_permlane') and overlap(pv, c.uses): n = max(n, 2)
        if c.is_dpp() and overlap(pv, c.uses): n = max(n, 2)
        if (c.mn.startswith('v_readlane') or c.mn.startswith('v_readfirstlane')) and overlap(pv, c.uses): n = max(n, 1)
        if ps:
            if c.is_valu() and overlap(ps, c.uses):
                n = max(n, 4 if c.mn.startswith(('v_readlane', 'v_writelane')) else 2)
            if c.kind in ('vload', 'vstore', 'dma') and overlap(ps, c.uses): n = max(n, 5)
            if c.kind in ('salu', 'branch', 'smem') and overlap(ps, c.uses): n = max(n, 4)
        if p.kind == 'trans' and c.kind in ('valu',) and overlap(pv, c.uses): n = max(n, 1)
        if p.kind == 'trans' and c.kind in ('vstore', 'dswrite') and overlap(pv, c.uses): n = max(n, 1)
        if p.mn.startswith('v_dot') and c.kind != 'label':
            if overlap(pv, c.uses + c.defs):
                same = c.mn == p.mn
                if same:
                    ab = regs_of(','.join(c.text.split(',')[1:3]))
                    if overlap(pv, ab): n = max(n, 3)
                else: n = max(n, 3)
        if p.mn.startswith('v_cmpx'):
            raise ValueError('v_cmpx not modelled')
    if p.kind == 'mfma':
        P = p.passes
        if c.kind == 'mfma':
            if overlap(p.defs, c.srcab): n = max(n, {4: 8, 8: 12}[P])
            if overlap(p.defs, c.srcc):
                if not (c.srcc == p.defs and c.passes == P): n = max(n, {4: 6, 8: 10}[P])
            elif overlap(p.defs, c.defs): n = max(n, {4: 6, 8: 10}[P])
        elif c.kind in ('valu', 'trans', 'vload', 'vstore', 'dma', 'dsread', 'dswrite'):
            if overlap(p.defs, c.uses + c.defs): n = max(n, {4: 8, 8: 12}[P])
            if c.is_valu() and overlap(p.srcc, c.defs): n = max(n, {4: 3, 8: 7}[P])
    if p.kind == 'vstore' and p.wide and overlap(p.data, c.defs):
        n = max(n, 2 if c.is_valu() else 1)
    if p.kind == 'salu' and ('x', 'm0') in p.defs and c.kind == 'dma': n = max(n, 1)
    if p.kind == 'salu' and ('x', 'exec') in p.defs and c.is_dpp(): n = max(n, 2)
    return n

def insert_nops(items):
    out = []
    nnops = 0
    for c in items:
        need = 0; dist = 0
        for p in reversed(out):
            if dist >= 20: break
            r = required(p, c)
            if r - dist > need: need = r - dist
            dist += states(p)
        if need > 0:
            nnops += need
            while need > 0:
                k = min(need, 16); out.append(I('s_nop %d' % (k - 1))); need -= k
        out.append(c)
    return out, nnops

def finalize(code):
    items = insert_waits(code.items)
    items, nn = insert_nops(items)
    txt = '\n'.join((it.text if it.kind == 'label' else '  ' + it.text) for it in items) + '\n'
    return txt, items, nn

class Alloc:
    def __init__(self, kind, lo, hi):
        self.kind = kind; self.free = set(range(lo, hi)); self.hw = lo
    def get(self, n=1, align=None):
        align = align or (1 if n == 1 else 2)
        for b in sorted(self.free):
            if b % align == 0 and all((b + i) in self.free for i in range(n)):
                for i in range(n): self.free.discard(b + i)
                self.hw = max(self.hw, b + n)
                return Rg(self.kind, b, n)
        raise RuntimeError('out of %s registers (need %d)' % (self.kind, n))
    def put(self, r):
        for i in range(r.n):
            assert (r.b + i) not in self.free
            self.free.add(r.b + i)

class Rg:
    def __init__(self, k, b, n): self.k = k; self.b = b; self.n = n
    def __getitem__(self, i):
        if isinstance(i, slice):
            a = i.start or 0; e = self.n if i.stop is None else i.stop
            assert 0 <= a < e <= self.n
            return Rg(self.k, self.b + a, e - a)
        assert 0 <= i < self.n
        return Rg(self.k, self.b + i, 1)
    def __str__(self):
        return '%s%d' % (self.k, self.b) if self.n == 1 else '%s[%d:%d]' % (self.k, self.b, self.b + self.n - 1)
    __repr__ = __str__
    def __format__(self, spec): return str(self)
```

```python
from asmlib import *
from wsmap import *
import struct, math
def fbits(x): return '0x%08x' % struct.unpack('<I', struct.pack('<f', x))[0]
LOG2E = 1.4426950408889634

sWS = 's[8:11]'
sWAVE = 's12'
sJ, sC, sIDX = 's13', 's14', 's15'
OOB = 0x40000000

class Opt:
    stamps = False
    sc_st = ''
    sc_ld = ''
    abl = set()
    LA = 40
    LA0 = 9
    RA = 6
    DIST = 28
    WG = 2
    BUD = 24
    RAMP = 10
    P4_LA = 14
    P4_BARDELAY = 12
    chunks3 = [4, 4, 8, 16, 32]

def prologue(c, nwg, endlabel, vlane='v0', extra_loads=''):
    c(f'''s_cmp_ge_u32 s2, {nwg}
    s_cbranch_scc1 {endlabel}''')
    if Opt.stamps: c('s_memrealtime s[96:97]\ns_memtime s[78:79]')
    c(f'''s_load_dwordx2 s[8:9], s[0:1], 80
    {extra_loads}
    v_lshrrev_b32 v1, 6, v0
    v_and_b32 {vlane}, 63, v0
    v_readfirstlane_b32 {sWAVE}, v1
    s_mov_b32 s10, 0x10000000
    s_mov_b32 s11, 0x20000
    s_and_b32 {sJ}, s2, 3
    s_bfe_u32 {sC}, s2, 0x10002
    s_lshr_b32 {sIDX}, s2, 3''')

NMARK = [0]
def mark(c):
    if not Opt.stamps: return
    k = NMARK[0]; NMARK[0] += 1
    assert k < 6
    c(f's_memtime s[{80 + 2 * k}:{81 + 2 * k}]')
def stamp(c, slot=0, kidx_sgpr='s77'):
    NMARK[0] = 0
    if not Opt.stamps: return
    c(f'''s_memrealtime s[98:99]
    s_memtime s[92:93]
    s_waitcnt lgkmcnt(0)
    s_lshl_b32 s94, {kidx_sgpr}, 9
    s_add_u32 s94, s94, s2
    s_lshl_b32 s94, s94, 2
    s_add_u32 s94, s94, {sWAVE}
    s_lshl_b32 s94, s94, 6
    s_add_u32 s94, s94, {STAMP}
    v_mov_b32 v250, s96
    v_mov_b32 v251, s97
    v_mov_b32 v252, s98
    v_mov_b32 v253, s99
    v_mov_b32 v254, s94
    s_mov_b64 exec, 1
    buffer_store_dwordx4 v[250:253], v254, {sWS}, 0 offen
    v_mov_b32 v250, s78
    v_mov_b32 v251, s80
    v_mov_b32 v252, s82
    v_mov_b32 v253, s84
    buffer_store_dwordx4 v[250:253], v254, {sWS}, 0 offen offset:16
    v_mov_b32 v250, s86
    v_mov_b32 v251, s88
    v_mov_b32 v252, s90
    v_mov_b32 v253, s92
    buffer_store_dwordx4 v[250:253], v254, {sWS}, 0 offen offset:32''')

def load_stats(c, V, sST, sT32, vlane):
    st = V.get(8, 4); va = V.get(); t = V.get()
    c(f'''v_and_b32 {va}, 31, {vlane}
    v_lshlrev_b32 {va}, 4, {va}
    v_lshrrev_b32 {t}, 5, {vlane}
    v_lshl_add_u32 {va}, {t}, 10, {va}
    s_lshl_b32 s3, {sT32}, 11
    s_add_u32 s3, s3, {sST}
    buffer_load_dwordx4 {st[0:4]}, {va}, {sWS}, s3 offen {Opt.sc_ld}
    buffer_load_dwordx4 {st[4:8]}, {va}, {sWS}, s3 offen offset:512 {Opt.sc_ld}''')
    V.put(t)
    def reduce(c2, bx, vvar):
        c2(f'''v_add_f32 {st[0]}, {st[0]}, {st[2]}
        v_add_f32 {st[1]}, {st[1]}, {st[3]}
        v_add_f32 {st[4]}, {st[4]}, {st[6]}
        v_add_f32 {st[5]}, {st[5]}, {st[7]}
        v_add_f32 {st[0]}, {st[0]}, {st[4]}
        v_add_f32 {st[1]}, {st[1]}, {st[5]}
        v_mov_b32 {st[2]}, {st[0]}
        v_mov_b32 {st[3]}, {st[1]}
        v_permlane32_swap_b32 {st[0]}, {st[2]}
        v_permlane32_swap_b32 {st[1]}, {st[3]}
        v_add_f32 {st[0]}, {st[0]}, {st[2]}
        v_add_f32 {st[1]}, {st[1]}, {st[3]}
        v_mul_f32 {st[0]}, {fbits(-1.0 / D)}, {st[0]}
        v_mul_f32 {st[1]}, {fbits(1.0 / D)}, {st[1]}
        v_cvt_pk_bf16_f32 {bx[0]}, {st[0]}, {st[0]}
        v_fma_f32 {st[1]}, -{st[0]}, {st[0]}, {st[1]}
        v_cvt_pk_bf16_f32 {bx[1]}, {st[0]}, {st[0]}
        v_max_f32 {st[1]}, 0, {st[1]}
        v_cvt_pk_bf16_f32 {bx[2]}, {st[0]}, {st[0]}
        v_add_f32 {vvar}, {fbits(1e-5)}, {st[1]}
        v_cvt_pk_bf16_f32 {bx[3]}, {st[0]}, {st[0]}''')
        V.put(st); V.put(va)
    return reduce

VOP3ONLY = ('v_fma_f32', 'v_cvt_pk', 'v_max3', 'v_min3', 'v_lshl_add', 'v_dot2_', 'v_bfe', 'v_pk_', 'v_add3', 'v_and_or', 'v_perm', 'v_mad', 'v_mul_lo', 'v_mul_hi', 'v_lshl_or', 'v_add_lshl')
def cost(i):
    if isinstance(i, Reset): return 0
    if isinstance(i, Wait): return 4
    if i.kind == 'trans': return 8
    if i.kind == 'mfma': return 8
    if i.kind in ('vload', 'vstore', 'dma'): return 12
    if i.kind == 'dswrite': return 8
    if i.kind == 'valu': return 4.4 if (i.mn.startswith(VOP3ONLY) or '0x' in i.text) else 4
    return 4

def stream_gemm(c, steps, acc, bop, xload, abuf, vLds, vW, sWbase, srdW, ring, chunk_sizes, side, sD='s40',
                pre=None, lds0=0, hooks=None, tail_side=True):
    RA, LA, DIST, WG, BUD = Opt.RA, Opt.LA, Opt.DIST, Opt.WG, Opt.BUD
    N = len(steps); NB = len(abuf)
    assert NB >= RA + 1
    chunks = []; n = 0; i = 0
    while n < N:
        z = chunk_sizes[min(i, len(chunk_sizes) - 1)]
        assert (n % ring) + z <= ring, (n, z)
        chunks.append((n, z)); n += z; i += 1
    cstart = {n0: ci for ci, (n0, z) in enumerate(chunks)}
    vmops = []
    seen = set()
    for p, (t, ks) in enumerate(steps):
        if ks not in seen:
            seen.add(ks)
            cc = Code(); xload(cc, ks)
            if cc.items: vmops.append((p, p, cc, 0))
    for ci, (n0, z) in enumerate(chunks):
        g, w = sWbase[z]; nq = z // 4
        nq_real = nq
        for k in range(nq):
            cc = Code()
            if k % 4 == 0:
                cc(f's_add_u32 m0, {w}, {lds0 + (n0 % ring) * 1024 + k * 1024}')
                cc(f's_add_u32 {sD}, {g}, {n0 * 1024 + k * 1024}')
            cc(f'buffer_load_dwordx4 {vW}, {srdW}, {sD} offen offset:{(k % 4) * 1024} lds', tag=('ch', ci))
            vmops.append((n0 - RA - 4 * (nq - 1 - k), n0 - RA, cc, n0 + z - ring))
    dm = [i for i, o in enumerate(vmops) if o[2].items[-1].kind == 'dma']
    for a_, b_ in reversed(list(zip(dm, dm[1:]))):
        if vmops[a_][0] > vmops[b_][0]: vmops[a_] = (vmops[b_][0],) + vmops[a_][1:]
    vmops = [o for _, o in sorted(enumerate(vmops), key=lambda e: (e[1][0], e[0]))]
    issued = 0
    freed = 0
    def try_issue(p, burst):
        nonlocal issued
        n = 0; cy = 0
        while issued < len(vmops):
            soft, hard, cc, mustfree = vmops[issued]
            force = min(o[1] for o in vmops[issued:]) <= p + 1
            if not force:
                if n >= burst: break
                if sum(1 for o in vmops[:issued] if o[1] > p) >= LA: break
                if soft - DIST > p: break
            if mustfree > freed:
                assert not force, 'ring slot not free in time'
                break
            c.add(cc); issued += 1; n += 1; cy += sum(cost(x) for x in cc.items)
        return cy
    try_issue(-RA - 1, Opt.LA0)
    if pre: c.add(pre)
    side = [(a, list(it)) for a, it in side]
    first = set()
    for p in range(-RA, N):
        q = p + RA
        if q in cstart:
            c.wait_vm([('ch', cstart[q])])
            c('s_barrier')
            freed = max(0, p)
        if p >= 0:
            t, ks = steps[p]
            if p % WG == 0: c.wait_lg([('a', min(N - 1, p + WG - 1))])
            cin = acc[t] if t in first else '0'
            first.add(t)
            c(f'v_mfma_f32_32x32x16_bf16 {acc[t]}, {abuf[p % NB]}, {bop(ks)}, {cin}')
        cy = (4 if (p + 1) % WG == 0 else 0) + (8 if (q + 1) in cstart else 0)
        if q < N:
            o = lds0 + (q % ring) * 1024
            c(f'ds_read_b128 {abuf[q % NB]}, {vLds[o // 65536]} offset:{o % 65536}', tag=('a', q)); cy += 4
        cy += try_issue(p, 2 if p < Opt.RAMP else 1)
        if hooks and p in hooks: c.add(hooks[p])
        while side and p >= side[0][0]:
            it = side[0][1]
            if not it: side.pop(0); continue
            if cy + cost(it[0]) > BUD: break
            cy += cost(it[0]); c.add(it.pop(0))
    assert issued == len(vmops)
    left = [x for a, it in side for x in it]
    if tail_side: c.add(left)
    return left

def wave_bases(c, sG, regs):
    for z, (g, w) in regs.items():
        c(f's_lshl_b32 {w}, {sWAVE}, {10 + int(math.log2(z // 4))}')
        c(f's_add_u32 {g}, {sG}, {w}')

def kd(name, vgpr=256, agpr=256, sgpr=102):
    acc = (vgpr + 3) // 4 * 4
    return f'''.p2align 6
.amdhsa_kernel {name}
  .amdhsa_next_free_vgpr {acc + agpr}
  .amdhsa_next_free_sgpr {sgpr}
  .amdhsa_accum_offset {acc}
  .amdhsa_group_segment_fixed_size 0
  .amdhsa_kernarg_size 88
  .amdhsa_user_sgpr_count 2
  .amdhsa_user_sgpr_kernarg_segment_ptr 1
  .amdhsa_system_sgpr_workgroup_id_x 1
  .amdhsa_float_denorm_mode_32 3
.end_amdhsa_kernel
'''
def entry(name, params, body):
    s = f'.globl {name}\n.p2align 8\n.type {name},@function\n{name}:\n'
    for r, v in params.items(): s += f'  s_mov_b32 {r}, {v}\n'
    if body: s += f'  s_branch {body}\n'
    return s
```

```python
from common import *
NE, NB_, NA, ND, NC = 54, 80, 64, 68, 25
NWG = NE + NB_ + NA + ND + NC
LDS = 81920
NT = 'nt'
def srd(c, s, off, size):
    c(f's_load_dwordx2 s[{s}:{s + 1}], s[0:1], {off}\ns_mov_b32 s{s + 2}, {size}\ns_mov_b32 s{s + 3}, 0x20000')
def div(c, q, r, x, d):
    c(f's_mul_i32 {q}, {x}, {65536 // d + 1}\ns_lshr_b32 {q}, {q}, 16\ns_mul_i32 {r}, {q}, {d}\ns_sub_u32 {r}, {x}, {r}')
def hilo(c, out, p, t):
    c(f'''v_cvt_pk_bf16_f32 {t}, {p}, {p}
    v_lshlrev_b32 {t}, 16, {t}
    v_sub_f32 {t}, {p}, {t}
    v_cvt_pk_bf16_f32 {out}, {p}, {t}''')
def halves(c, x, t):
    c(f'v_mov_b32 {t}, {x}\nv_permlane32_swap_b32 {x}, {t}\nv_add_f32 {x}, {x}, {t}')

def task_e(c):
    V = Alloc('v', 1, 248)
    c('K0_E:'); srd(c, 16, 40, D * F * 2); srd(c, 20, 48, D * F * 2)
    sTK, sCC, sKR, sO, sL = 's24', 's25', 's26', 's27', 's28'
    vE = V.get(2); t = V.get(3); vL = V.get()
    c(f'''s_lshl_b32 {sTK}, s2, 2
    s_add_u32 {sTK}, {sTK}, {sWAVE}
    s_lshr_b32 {sCC}, {sTK}, 3
    s_and_b32 {sKR}, {sTK}, 7
    v_lshrrev_b32 {t[0]}, 3, v0
    v_mul_u32_u24 {t[0]}, 3456, {t[0]}
    v_bfe_u32 {t[1]}, v0, 4, 1
    v_lshlrev_b32 {t[1]}, 1, {t[1]}
    v_and_b32 {t[2]}, 7, v0
    v_xor_b32 {t[1]}, {t[1]}, {t[2]}
    v_lshl_add_u32 {vE[0]}, {t[1]}, 4, {t[0]}
    v_xor_b32 {t[1]}, 4, {t[1]}
    v_lshl_add_u32 {vE[1]}, {t[1]}, 4, {t[0]}
    s_mul_i32 {sO}, {sKR}, {80 * 3456}
    s_lshl_b32 s3, {sCC}, 7
    s_add_u32 {sO}, {sO}, s3
    s_mul_i32 {sL}, {sWAVE}, 20480
    s_waitcnt lgkmcnt(0)''')
    for n in range(10):
        for mat in range(2):
            c(f's_add_u32 m0, {sL}, {mat * 10240 + n * 1024}')
            c(f'buffer_load_dwordx4 {vE[mat]}, s[{16 + 4 * mat}:{19 + 4 * mat}], {sO} offen {NT} lds', tag=('e', n))
        c(f's_add_u32 {sO}, {sO}, {8 * 3456}')
    vR = V.get(4); cs = V.get(4)
    c(f'''v_lshlrev_b32 {vL}, 4, v0
    v_lshrrev_b32 {t[0]}, 5, v0
    v_bfe_u32 {t[1]}, v0, 2, 2
    v_lshl_add_u32 {t[0]}, {t[0]}, 3, {t[1]}
    v_lshlrev_b32 {t[0]}, 7, {t[0]}              ; row * 128
    v_bfe_u32 {t[1]}, v0, 3, 2
    v_lshl_add_u32 {t[0]}, {t[1]}, 5, {t[0]}     ; swizzle * 32
    v_bfe_u32 {t[1]}, v0, 4, 1
    v_mul_u32_u24 {t[1]}, 10240, {t[1]}
    v_add_u32 {t[0]}, {t[0]}, {t[1]}
    v_and_b32 {t[1]}, 1, v0
    v_lshl_add_u32 {t[0]}, {t[1]}, 4, {t[0]}
    v_bfe_u32 {t[1]}, v0, 1, 1
    v_lshl_add_u32 {t[0]}, {t[1]}, 3, {t[0]}
    v_add_u32 {vR[0]}, {sL}, {t[0]}''')
    for jt in range(1, 4): c(f'v_xor_b32 {vR[jt]}, {32 * jt}, {vR[0]}')
    sB = ['s30', 's31', 's32', 's33']; sS = ['s34', 's35', 's36', 's37']; sX = ['s38', 's39', 's40', 's41']
    for jt in range(4):
        c(f's_lshl_b32 s42, {sCC}, 2\ns_add_u32 s42, s42, {jt}'); div(c, 's43', 's44', 's42', 7)
        c(f'''s_mul_i32 s43, s43, {W3G}
        s_add_u32 s43, s43, {W3F}
        s_mul_i32 s45, s44, 41
        s_cmp_lt_u32 s44, {P3_NA}
        s_cselect_b32 s45, s44, s45
        s_cselect_b32 {sS[jt]}, {P3_NA}, 1
        s_lshl_b32 {sS[jt]}, {sS[jt]}, 10
        s_lshl_b32 s45, s45, 10
        s_add_u32 s43, s43, s45
        s_mul_i32 s45, {sKR}, 5
        s_mul_i32 s45, s45, {sS[jt]}
        s_add_u32 {sB[jt]}, s43, s45
        s_mul_i32 s45, {sS[jt]}, 40
        s_add_u32 {sX[jt]}, s43, s45
        v_mov_b32 {cs[jt]}, 0''')
    c('s_mov_b32 s46, 0x3f803f80')
    fr = [V.get(4, 4) for _ in range(8)]
    for ksl in range(5):
        c.wait_vm([('e', 2 * ksl + 1)])
        for jt in range(4):
            f = fr[(ksl * 4 + jt) % 8]
            for rd in range(2): c(f'ds_read_b64_tr_b16 {f[2 * rd:2 * rd + 2]}, {vR[jt]} offset:{ksl * 2048 + rd * 512}')
        for jt in range(4):
            f = fr[(ksl * 4 + jt) % 8]
            c(f'buffer_store_dwordx4 {f}, {vL}, {sWS}, {sB[jt]} offen\ns_add_u32 {sB[jt]}, {sB[jt]}, {sS[jt]}')
        for k in range(4):
            for jt in range(4): c(f'v_dot2_f32_bf16 {cs[jt]}, {fr[(ksl * 4 + jt) % 8][k]}, s46, {cs[jt]}')
    c(f'''s_lshr_b32 s3, {sKR}, 2
    s_lshl_b32 s3, s3, 9
    s_and_b32 s42, {sKR}, 3
    s_lshl_b32 s42, s42, 2
    s_add_u32 s42, s42, s3''')
    for jt in range(4): halves(c, cs[jt], t[0])
    for jt in range(4): hilo(c, cs[jt], cs[jt], t[0]); c(f's_add_u32 {sX[jt]}, {sX[jt]}, s42')
    c('s_mov_b32 exec_hi, 0')
    for jt in range(4): c(f'buffer_store_dword {cs[jt]}, {vL}, {sWS}, {sX[jt]} offen')
    c('s_branch K0_DONE')

def task_dc(c, name, wg0, ntask, karg, size, WF, WG_):
    V = Alloc('v', 1, 248)
    c(f'K0_{name}:'); srd(c, 16, karg, size)
    sTK, sKS, sCC, sO, sL = 's24', 's25', 's26', 's27', 's28'
    vD = V.get(2); t = V.get(3); vL = V.get()
    c(f'''s_sub_u32 {sTK}, s2, {wg0}
    s_lshl_b32 {sTK}, {sTK}, 2
    s_add_u32 {sTK}, {sTK}, {sWAVE}
    s_cmp_ge_u32 {sTK}, {ntask}
    s_cbranch_scc1 K0_END''')
    div(c, sKS, sCC, sTK, 5)
    c(f'''v_lshrrev_b32 {t[0]}, 4, v0
    v_lshlrev_b32 {t[1]}, 1, {t[0]}
    v_and_b32 {t[2]}, 15, v0
    v_xor_b32 {t[1]}, {t[1]}, {t[2]}
    v_mul_u32_u24 {t[0]}, 1280, {t[0]}
    v_lshl_add_u32 {vD[0]}, {t[1]}, 4, {t[0]}
    v_xor_b32 {vD[1]}, 128, {vD[0]}
    s_lshl_b32 {sL}, {sWAVE}, 13
    s_lshl_b32 s3, {sCC}, 8''')
    if name == 'D':
        c(f's_mul_i32 {sO}, {sKS}, {32 * 1280}\ns_add_u32 {sO}, {sO}, s3')
    else:
        div(c, 's29', 's30', sKS, 5)
        c(f'''s_mul_i32 {sO}, s29, {160 * 1280}
        s_add_u32 {sO}, {sO}, s3
        s_mul_i32 s31, s30, {40 * 1280}
        s_cmp_lt_u32 s30, 4
        s_cselect_b32 s31, s31, 0
        s_add_u32 {sO}, {sO}, s31
        s_cmp_lt_u32 s30, 4''')
    c('s_waitcnt lgkmcnt(0)')
    for n in range(8):
        kq = n >> 1
        if name == 'D': c(f's_mov_b32 s31, {4 * n * 1280}')
        else:
            c(f's_mov_b32 s31, {(40 * kq + 20 * (n & 1) + 16) * 1280}')
            c(f's_cselect_b32 s31, {(20 * (kq >> 1) + 8 * (kq & 1) + 4 * (n & 1)) * 1280}, s31')
        c(f'''v_add_u32 {t[0]}, s31, {vD[(n >> 1) & 1]}
        s_mov_b32 m0, {sL}
        buffer_load_dwordx4 {t[0]}, s[16:19], {sO} offen {NT} lds
        s_or_b32 {sL}, {sL}, {sL}''' if False else f'''v_add_u32 {t[n % 3]}, s31, {vD[(n >> 1) & 1]}
        s_lshl_b32 m0, {sWAVE}, 13''')
        c(f's_or_b32 m0, m0, {n * 1024}' if n else 's_nop 0')
        if name == 'C': c('s_cmp_lt_u32 s30, 4')
        c(f'buffer_load_dwordx4 {t[n % 3]}, s[16:19], {sO} offen {NT} lds', tag='d')
    vR = V.get(8)
    c(f'''v_lshlrev_b32 {vL}, 4, v0
    v_lshrrev_b32 {t[0]}, 4, v0
    v_bfe_u32 {t[1]}, v0, 2, 2
    v_lshl_add_u32 {t[0]}, {t[0]}, 3, {t[1]}
    v_lshlrev_b32 {t[0]}, 8, {t[0]}
    v_bfe_u32 {t[1]}, v0, 2, 3
    v_lshl_add_u32 {t[0]}, {t[1]}, 5, {t[0]}
    v_and_b32 {t[1]}, 1, v0
    v_lshl_add_u32 {t[0]}, {t[1]}, 4, {t[0]}
    v_bfe_u32 {t[1]}, v0, 1, 1
    v_lshl_add_u32 {t[0]}, {t[1]}, 3, {t[0]}
    v_add_u32 {vR[0]}, {sL}, {t[0]}''')
    for jt in range(1, 8): c(f'v_xor_b32 {vR[jt]}, {32 * jt}, {vR[0]}')
    sB = [f's{32 + j}' for j in range(8)]
    for jt in range(8):
        c(f's_lshl_b32 s42, {sCC}, 3\ns_add_u32 s42, s42, {jt}'); div(c, 's43', 's44', 's42', 5)
        c(f'''s_mul_i32 s43, s43, {WG_}
        s_mul_i32 s45, {sKS}, 5
        s_add_u32 s45, s45, s44
        s_lshl_b32 s45, s45, 10
        s_add_u32 s43, s43, s45
        s_add_u32 {sB[jt]}, s43, {WF}''')
    fr = [V.get(4, 4) for _ in range(8)]
    c.wait_vm('d')
    for jt in range(8):
        for rd in range(2): c(f'ds_read_b64_tr_b16 {fr[jt][2 * rd:2 * rd + 2]}, {vR[jt]} offset:{rd * 1024}')
    for jt in range(8): c(f'buffer_store_dwordx4 {fr[jt]}, {vL}, {sWS}, {sB[jt]} offen')
    c('s_branch K0_DONE')

def task_a(c, wg0):
    V = Alloc('v', 1, 248)
    c('K0_A:'); srd(c, 16, 0, S * D * 2)
    sTK = 's24'; t = V.get(2); vI = V.get(); vS = V.get(); vL = V.get()
    xr = [V.get(4, 4) for _ in range(10)]; st = V.get(4, 4); ff = V.get(4, 4)
    c(f'''s_sub_u32 {sTK}, s2, {wg0}
    s_lshl_b32 {sTK}, {sTK}, 2
    s_add_u32 {sTK}, {sTK}, {sWAVE}
    v_lshrrev_b32 {t[0]}, 3, v0
    v_and_b32 {t[1]}, 7, v0
    v_mul_u32_u24 {vI}, 1280, {t[0]}
    v_lshl_add_u32 {vI}, {t[1]}, 4, {vI}
    v_lshlrev_b32 {vS}, 9, {t[1]}
    v_lshl_add_u32 {vS}, {t[0]}, 4, {vS}
    s_mul_i32 s25, {sTK}, {8 * 1280}
    s_waitcnt lgkmcnt(0)''')
    for i in range(10): c(f'buffer_load_dwordx4 {xr[i]}, {vI}, s[16:19], s25 offen offset:{i * 128} {NT}')
    c(f'''v_lshlrev_b32 {vL}, 4, v0
    s_lshl_b32 s26, {sTK}, 13
    s_add_u32 s26, s26, {KVP[0]}''')
    assert KVP[1] == KVP[0] + (1 << 20)
    for k in range(4): c(f'v_mov_b32 {ff[k]}, -1\nv_mov_b32 {st[k]}, 0')
    for k in range(8):
        if k == 4: c('s_addk_i32 s26, 4096')
        c(f'buffer_store_dwordx4 {ff}, {vL}, {sWS}, s26 offen offset:{(k % 4) * 1024}')
    c(f'''s_lshr_b32 s27, {sTK}, 2
    s_and_b32 s3, {sTK}, 3
    s_lshl_b32 s3, s3, 7
    s_mul_i32 s28, s27, 40960
    s_add_u32 s28, s28, s3
    s_add_u32 s28, s28, {X[0]}
    s_lshl_b32 s29, s27, 11
    s_add_u32 s29, s29, s3
    s_add_u32 s29, s29, {ST[0]}
    s_mov_b32 s46, 0x3f803f80''')
    for i in range(10):
        c(f'buffer_store_dwordx4 {xr[i]}, {vS}, {sWS}, s28 offen\ns_addk_i32 s28, 4096')
        for k in range(4): c(f'v_dot2_f32_bf16 {st[0]}, {xr[i][k]}, s46, {st[0]}\nv_dot2_f32_bf16 {st[1]}, {xr[i][k]}, {xr[i][k]}, {st[1]}')
    for dp in ('quad_perm:[1,0,3,2]', 'quad_perm:[2,3,0,1]', 'row_half_mirror'):
        for k in range(2): c(f'v_add_f32_dpp {st[k]}, {st[k]}, {st[k]} {dp} row_mask:0xf bank_mask:0xf')
    c(f'''v_cmp_eq_u32 vcc, 0, {t[1]}
    v_cndmask_b32 {st[0]}, 0, {st[0]}, vcc
    v_cndmask_b32 {st[1]}, 0, {st[1]}, vcc
    s_mov_b32 exec_lo, 0x0f0f0f0f
    s_mov_b32 exec_hi, 0x0f0f0f0f
    buffer_store_dwordx4 {st}, {vS}, {sWS}, s29 offen
    s_branch K0_DONE''')

def task_b(c, wg0):
    V = Alloc('v', 1, 248)
    PH, IDM, CSX = 0, 4224, 8448
    c('K0_B:'); srd(c, 16, 8, D * 3 * D * 2); srd(c, 20, 16, H * DH * DH * 2)
    sG, sKR, sKB = 's24', 's25', 's26'
    t = V.get(4); vA = V.get(); vT = V.get(); vL = V.get(); ph = V.get(2, 2); z = V.get(4, 4)
    c(f's_sub_u32 s3, s2, {wg0}'); div(c, sG, sKR, 's3', 5)
    c(f'''s_lshl_b32 {sKB}, {sKR}, 2
    s_add_u32 {sKB}, {sKB}, {sWAVE}
    v_and_b32 {t[0]}, 0x13, v0
    v_bfe_u32 {t[1]}, v0, 2, 1
    v_lshl_add_u32 {t[0]}, {t[1]}, 3, {t[0]}
    v_bfe_u32 {t[1]}, v0, 3, 1
    v_lshl_add_u32 {t[0]}, {t[1]}, 2, {t[0]}
    v_mul_u32_u24 {t[0]}, 3840, {t[0]}
    v_lshrrev_b32 {t[1]}, 5, v0
    v_lshl_add_u32 {vA}, {t[1]}, 4, {t[0]}
    s_lshl_b32 s3, {sWAVE}, 6
    v_add_u32 {vT}, s3, v0
    v_lshlrev_b32 {t[0]}, 3, {vT}
    s_mul_i32 s27, {sG}, 1600
    s_mul_i32 s28, {sKB}, {32 * 3840}
    s_mul_i32 s3, {sG}, 80
    s_add_u32 s28, s28, s3
    s_waitcnt lgkmcnt(0)
    buffer_load_dwordx2 {ph}, {t[0]}, s[20:23], s27 offen''')
    af = [[V.get(4, 4) for j in range(3)] for sec in range(3)]
    for sec, cb in enumerate((640, 1280, 0)):
        for j in range(3): c(f'buffer_load_dwordx4 {af[sec][j]}, {vA}, s[16:19], s28 offen offset:{cb * 2 + 32 * j}')
    for k in range(4): c(f'v_mov_b32 {z[k]}, 0')
    c(f'v_lshlrev_b32 {vL}, 4, v0\nv_lshlrev_b32 {t[0]}, 4, {vT}')
    for k in range(3): c(f'ds_write_b128 {t[0]}, {z} offset:{4096 * k}', tag='z')
    c(f'''v_cmp_le_u32 vcc, 100, {vT}
    v_cndmask_b32 {t[0]}, 0, 1, vcc
    v_mul_u32_u24 {t[1]}, 100, {t[0]}
    v_sub_u32 {t[1]}, {vT}, {t[1]}
    v_mul_u32_u24 {t[2]}, 52429, {t[1]}
    v_lshrrev_b32 {t[2]}, 18, {t[2]}
    v_mul_u32_u24 {t[3]}, 5, {t[2]}
    v_sub_u32 {t[1]}, {t[1]}, {t[3]}
    v_mul_u32_u24 {t[2]}, 88, {t[2]}
    v_lshl_add_u32 {t[2]}, {t[1]}, 3, {t[2]}
    v_mul_u32_u24 {t[0]}, {20 * 88 + 40}, {t[0]}
    v_add_u32 {t[2]}, {t[2]}, {t[0]}
    v_mul_u32_u24 {t[3]}, 90, {vT}
    v_mov_b32 {t[1]}, 0x3f80''')
    c.wait_lg('z'); c('s_barrier')
    c(f'''v_cmp_gt_u32 vcc, 200, {vT}
    s_and_saveexec_b64 s[30:31], vcc''')
    c(f'ds_write_b64 {t[2]}, {ph} offset:{PH}', tag='w')
    c(f'''s_mov_b64 exec, s[30:31]
    v_cmp_gt_u32 vcc, 40, {vT}
    s_and_saveexec_b64 s[30:31], vcc''')
    c(f'ds_write_b16 {t[3]}, {t[1]} offset:{IDM}', tag='w')
    c('s_mov_b64 exec, s[30:31]')
    combos = [(0, 0), (1, 0), (1, 1), (2, 1), (2, 2), (3, 2)]
    vB = V.get(6); u = V.get(2)
    c(f'''v_lshrrev_b32 {t[0]}, 5, v0
    v_bfe_u32 {t[1]}, v0, 2, 2
    v_lshl_add_u32 {t[0]}, {t[0]}, 3, {t[1]}
    v_mul_u32_u24 {t[0]}, 88, {t[0]}            ; row * 88
    v_bfe_u32 {t[1]}, v0, 4, 1
    v_bfe_u32 {t[2]}, v0, 1, 1
    v_lshl_add_u32 {t[1]}, {t[1]}, 1, {t[2]}
    v_lshlrev_b32 {u[0]}, 2, {t[1]}             ; 4 (quad >> 1)
    v_and_b32 {t[1]}, 1, v0
    v_mul_u32_u24 {u[1]}, 40, {t[1]}
    v_mov_b32 {t[3]}, 80''')
    for n, (tt, sec) in enumerate(combos):
        c(f'''v_add_u32 {t[1]}, {16 * tt - 20 * sec}, {u[0]}
        v_cmp_gt_u32 vcc, 20, {t[1]}
        v_lshl_add_u32 {t[1]}, {t[1]}, 1, {u[1]}
        v_cndmask_b32 {t[1]}, {t[3]}, {t[1]}, vcc
        v_add_u32 {vB[n]}, {t[0]}, {t[1]}''')
    c.wait_lg('w'); c('s_barrier')
    bf_ = [[V.get(4, 4) for j in range(3)] for n in range(6)]
    Dt = [V.get(16, 4) for _ in range(4)]
    for n, (tt, sec) in enumerate(combos):
        for j in range(3):
            for rd in range(2):
                c(f'ds_read_b64_tr_b16 {bf_[n][j][2 * rd:2 * rd + 2]}, {vB[n]} offset:{(IDM if sec == 1 else PH) + (16 * j + 4 * rd) * 88}')
    seen = set()
    for n, (tt, sec) in enumerate(combos):
        for j in range(3):
            c(f'v_mfma_f32_32x32x16_bf16 {Dt[tt]}, {af[sec][j]}, {bf_[n][j]}, {Dt[tt] if tt in seen else 0}'); seen.add(tt)
    cs = V.get(4); c('s_mov_b32 s46, 0x3f803f80')
    c(f'''s_mul_i32 s27, {sG}, {W1G}
    s_add_u32 s27, s27, {W1F}''')
    for tt in range(4):
        o = [bf_[tt][0], bf_[tt][1]]
        stride = P1_NA if tt < P1_NA else 1; base = tt if tt < P1_NA else 41 * tt
        c(f's_mul_i32 s3, {sKB}, {2 * stride * 1024}\ns_add_u32 s3, s3, s27\ns_add_u32 s3, s3, {base * 1024}\nv_mov_b32 {cs[tt]}, 0')
        for hf in range(2):
            for k in range(4): c(f'v_cvt_pk_bf16_f32 {o[hf][k]}, {Dt[tt][8 * hf + 2 * k]}, {Dt[tt][8 * hf + 2 * k + 1]}')
            c(f'buffer_store_dwordx4 {o[hf]}, {vL}, {sWS}, s3 offen offset:{hf * stride * 1024}')
        for hf in range(2):
            for k in range(4): c(f'v_dot2_f32_bf16 {cs[tt]}, {o[hf][k]}, s46, {cs[tt]}')
    c(f'''v_and_b32 {t[0]}, 31, v0
    v_lshlrev_b32 {t[0]}, 2, {t[0]}
    s_lshl_b32 s3, {sWAVE}, 9
    v_add_u32 {t[1]}, s3, {t[0]}
    s_lshl_b32 s3, {sWAVE}, 7
    v_add_u32 {t[2]}, s3, {t[0]}''')
    for tt in range(4): halves(c, cs[tt], t[3]); c(f'ds_write_b32 {t[1]}, {cs[tt]} offset:{CSX + 128 * tt}', tag='cs')
    c.wait_lg('cs'); c('s_barrier')
    for w in range(4): c(f'ds_read_b32 {cs[w]}, {t[2]} offset:{CSX + 512 * w}')
    c(f'''v_add_f32 {cs[0]}, {cs[0]}, {cs[1]}
    v_add_f32 {cs[2]}, {cs[2]}, {cs[3]}
    v_add_f32 {cs[0]}, {cs[0]}, {cs[2]}''')
    hilo(c, z[0], cs[0], t[0])
    c(f'''s_mul_i32 s3, {sWAVE}, 41
    s_add_u32 s3, s3, 40
    s_add_u32 s28, {sWAVE}, {40 * P1_NA}
    s_cmp_lt_u32 {sWAVE}, {P1_NA}
    s_cselect_b32 s3, s28, s3
    s_lshl_b32 s3, s3, 10
    s_add_u32 s27, s27, s3
    s_mov_b32 exec_hi, 0
    s_cmp_eq_u32 {sKR}, 4
    s_cbranch_scc1 K0_B4
    s_lshl_b32 s3, {sKR}, 2
    s_add_u32 s27, s27, s3
    buffer_store_dword {z[0]}, {vL}, {sWS}, s27 offen
    s_branch K0_DONE
    K0_B4:
    buffer_store_dwordx4 {z}, {vL}, {sWS}, s27 offen offset:512
    s_branch K0_DONE''')

def k0_body():
    c = Code()
    c('K0_BODY:')
    prologue(c, NWG, 'K0_END')
    b0 = NE; a0 = b0 + NB_; d0 = a0 + NA; c0 = d0 + ND
    c(f'''s_cmp_lt_u32 s2, {b0}
    s_cbranch_scc1 K0_E
    s_cmp_lt_u32 s2, {a0}
    s_cbranch_scc1 K0_B
    s_cmp_lt_u32 s2, {d0}
    s_cbranch_scc1 K0_A
    s_cmp_lt_u32 s2, {c0}
    s_cbranch_scc1 K0_D''')
    for fn in (lambda: task_dc(c, 'C', c0, 100, 24, D * D * 2, WOF, WOG), lambda: task_dc(c, 'D', d0, 270, 56, F * D * 2, WDF, WDG),
               lambda: task_a(c, a0), lambda: task_b(c, b0), lambda: task_e(c)):
        fn(); c.add(Reset())
    c('K0_DONE:')
    if Opt.stamps: c('s_waitcnt vmcnt(0)\ns_mov_b64 exec, -1')
    stamp(c)
    c('K0_END:\ns_endpgm')
    return c
```

```python
from common import *
IMG = 4096; CMP = 40960
def minmax(e, vals, mx, mn):
    for op, d in (('v_max3_f32', mx), ('v_min3_f32', mn)):
        pass
    e(f'v_max3_f32 {mx}, {vals[0]}, {vals[1]}, {vals[2]}\nv_min3_f32 {mn}, {vals[0]}, {vals[1]}, {vals[2]}')
    for i in range(3, 19, 2):
        e(f'v_max3_f32 {mx}, {mx}, {vals[i]}, {vals[i + 1]}\nv_min3_f32 {mn}, {mn}, {vals[i]}, {vals[i + 1]}')
    e(f'v_max_f32 {mx}, {mx}, {vals[19]}\nv_min_f32 {mn}, {mn}, {vals[19]}')

def softmax_k(vals, ep, out, vs, t):
    e = Code(); mx, mn, sp, sn = t[0], t[1], t[2], t[3]
    minmax(e, vals, mx, mn)
    e(f'v_mul_f32 {mx}, {mx}, {vs}\nv_mul_f32 {mn}, {mn}, {vs}')
    for i in range(0, 20, 2):
        for k in (i, i + 1): e(f'v_fma_f32 {ep[k]}, {vals[k]}, {vs}, -{mx}')
        for k in (i, i + 1): e(f'v_fma_f32 {vals[k]}, -{vals[k]}, {vs}, {mn}')
        for k in (i, i + 1): e(f'v_exp_f32 {ep[k]}, {ep[k]}')
        for k in (i, i + 1): e(f'v_exp_f32 {vals[k]}, {vals[k]}')
        if i == 2: e(f'v_add_f32 {sp}, {ep[0]}, {ep[1]}\nv_add_f32 {sn}, {vals[0]}, {vals[1]}')
        if i > 2:
            for k in (i - 2, i - 1): e(f'v_add_f32 {sp}, {sp}, {ep[k]}\nv_add_f32 {sn}, {sn}, {vals[k]}')
    for k in (18, 19): e(f'v_add_f32 {sp}, {sp}, {ep[k]}\nv_add_f32 {sn}, {sn}, {vals[k]}')
    e(f'v_rcp_f32 {sp}, {sp}\nv_rcp_f32 {sn}, {sn}')
    for arr, r_, o in ((ep, sp, 0), (vals, sn, 10)):
        for i in range(0, 20, 4):
            for k in range(i, i + 4): e(f'v_mul_f32 {arr[k]}, {arr[k]}, {r_}')
            e(f'v_cvt_pk_bf16_f32 {out[o + i // 2]}, {arr[i]}, {arr[i + 1]}\nv_cvt_pk_bf16_f32 {out[o + i // 2 + 1]}, {arr[i + 2]}, {arr[i + 3]}')
    return e

def softmax_q(pairs, ep, out, vs2, t):
    e = Code(); vals = [p[i] for p in pairs for i in range(2)]
    m, sp, sn = t[0:2], t[2:4], t[4:6]; vs = vs2[0]
    minmax(e, vals, m[0], m[1])
    e(f'v_mul_f32 {m[0]}, {m[0]}, {vs}\nv_mul_f32 {m[1]}, {m[1]}, {vs}')
    for i in range(10):
        e(f'v_pk_fma_f32 {ep[2 * i:2 * i + 2]}, {pairs[i]}, {vs2}, {m} op_sel:[0,0,0] op_sel_hi:[1,0,0] neg_lo:[0,0,1] neg_hi:[0,0,1]')
        e(f'v_pk_fma_f32 {pairs[i]}, {pairs[i]}, {vs2}, {m} op_sel:[0,0,1] op_sel_hi:[1,0,1] neg_lo:[1,0,0] neg_hi:[1,0,0]')
    for i in range(10):
        for k in (2 * i, 2 * i + 1): e(f'v_exp_f32 {ep[k]}, {ep[k]}')
        for k in (2 * i, 2 * i + 1): e(f'v_exp_f32 {vals[k]}, {vals[k]}')
        if i == 1: e(f'v_pk_add_f32 {sp}, {ep[0:2]}, {ep[2:4]}')
        if i == 2: e(f'v_pk_add_f32 {sn}, {pairs[0]}, {pairs[1]}')
        if i >= 2: e(f'v_pk_add_f32 {sp}, {sp}, {ep[2 * i:2 * i + 2]}')
        if i >= 3: e(f'v_pk_add_f32 {sn}, {sn}, {pairs[i - 1]}')
        e(f'v_cvt_pk_bf16_f32 {out[i]}, {ep[2 * i]}, {ep[2 * i + 1]}')
    e(f'''v_pk_add_f32 {sn}, {sn}, {pairs[9]}
    v_add_f32 {sp[0]}, {sp[0]}, {sp[1]}
    v_add_f32 {sn[0]}, {sn[0]}, {sn[1]}
    v_rcp_f32 {sn[0]}, {sn[0]}
    s_nop 0
    v_mul_f32 {sn[0]}, {sn[0]}, {sp[0]}''')
    for i in range(10): e(f'v_pk_mul_f32 {pairs[i]}, {pairs[i]}, {sn} op_sel:[0,0] op_sel_hi:[1,0]')
    for i in range(10): e(f'v_cvt_pk_bf16_f32 {out[10 + i]}, {pairs[i][0]}, {pairs[i][1]}')
    return e

def p1_body():
    c = Code(); V = Alloc('v', 1, 248); A = Alloc('a', 0, 256)
    c('P1_BODY:')
    prologue(c, 256, 'P1_END')
    sG, sT32, sRB, sGI = 's24', 's25', 's34', 's33'
    bases = {4: ('s26', 's27'), 8: ('s28', 's29'), 16: ('s30', 's31'), 32: ('s42', 's43')}
    sXo = 's32'
    c(f'''s_and_b32 s3, {sIDX}, 3
    s_lshl_b32 {sRB}, {sJ}, 2
    s_add_u32 {sRB}, {sRB}, s3
    s_lshl_b32 {sT32}, {sRB}, 2
    s_add_u32 {sT32}, {sT32}, {sWAVE}
    s_lshr_b32 s3, {sIDX}, 2
    s_lshl_b32 {sGI}, {sC}, 3
    s_add_u32 {sGI}, {sGI}, s3
    s_mul_i32 {sG}, {sGI}, {W1G}
    s_add_u32 {sG}, {sG}, {W1F}''')
    wave_bases(c, sG, bases)
    vL = V.get(); vLds = V.get(3)
    c(f'''v_lshlrev_b32 {vL}, 4, v0
    v_mov_b32 {vLds[0]}, {vL}
    v_add_u32 {vLds[1]}, 0x10000, {vL}
    v_add_u32 {vLds[2]}, 0x20000, {vL}
    s_mul_i32 {sXo}, {sT32}, 40960
    s_add_u32 {sXo}, {sXo}, s16
    s_waitcnt lgkmcnt(0)''')
    red = load_stats(c, V, 's17', sT32, 'v0')
    xf = [A.get(4, 4) for _ in range(40)]
    abuf = [A.get(4, 4) for _ in range(Opt.RA + 2)]
    acc = [V.get(16, 4) for _ in range(4)]
    bx = V.get(4, 4); vvar = V.get(); vs2 = V.get(2, 2); vs = vs2[0]; vrs = vs2[1]
    def xload(cc, ks):
        if ks == 40: return
        if ks and ks % 4 == 0: cc(f's_addk_i32 {sXo}, 4096')
        cc(f'buffer_load_dwordx4 {xf[ks]}, {vL}, {sWS}, {sXo} offen offset:{(ks % 4) * 1024} {Opt.sc_ld}')
    st = Code(); red(st, bx, vvar)
    st(f'v_rsq_f32 {vrs}, {vvar}\ns_nop 0\nv_mul_f32 {vs}, {fbits(LOG2E)}, {vrs}')
    vIw, vA, vB, vCw, vCp, vKV, vO, vO2 = (V.get() for _ in range(8)); vF = V.get(2); ID = V.get(4, 4)
    t = V.get(6, 2)
    sKVs, sKVl, sO1, sO2 = 's35', 's41', 's44', 's45'
    ad = Code()
    ad(f'''v_lshrrev_b32 {t[0]}, 5, v0                 ; half
    v_and_b32 {t[1]}, 31, v0
    s_lshl_b32 s3, {sWAVE}, 5
    v_add_u32 {t[2]}, s3, {t[1]}
    v_mul_u32_u24 {t[2]}, 144, {t[2]}
    v_mul_u32_u24 {t[3]}, 18432, {t[0]}
    v_add_u32 {t[2]}, {IMG}, {t[2]}
    v_add_u32 {vIw}, {t[2]}, {t[3]}
    v_bfe_u32 {t[2]}, v0, 2, 2
    v_lshlrev_b32 {t[2]}, 1, {t[2]}
    v_add_u32 {t[2]}, {t[2]}, {t[0]}
    v_mul_u32_u24 {t[2]}, 288, {t[2]}           ; (2 half + 4 r) * 144
    s_lshr_b32 s46, {sWAVE}, 1
    s_mul_i32 s3, s46, 18432
    s_add_u32 s3, s3, {IMG}
    v_add_u32 {t[2]}, s3, {t[2]}
    v_bfe_u32 {t[3]}, v0, 4, 1
    v_and_b32 {t[4]}, 3, v0
    v_lshl_add_u32 {t[3]}, {t[3]}, 2, {t[4]}
    v_min_u32 {t[4]}, 4, {t[3]}
    v_min_u32 {t[3]}, 5, {t[3]}
    v_lshl_add_u32 {vA}, {t[4]}, 3, {t[2]}
    v_lshl_add_u32 {vB}, {t[3]}, 3, {t[2]}
    s_and_b32 s47, {sWAVE}, 1
    s_mul_i32 s47, s47, 40
    v_add_u32 {vA}, s47, {vA}
    v_add_u32 {vB}, 80, {vB}
    s_mul_i32 s3, s46, {21 * 80}
    s_add_u32 s3, s3, s47
    s_add_u32 s3, s3, {CMP}
    v_mul_u32_u24 {t[2]}, 80, {t[1]}
    v_lshl_add_u32 {t[2]}, {t[0]}, 3, {t[2]}
    v_add_u32 {vCw}, s3, {t[2]}
    s_lshl_b32 s3, {sWAVE}, 10
    v_add_u32 {vKV}, s3, {vL}
    v_add_u32 {vCp}, {CMP}, {vKV}
    v_mov_b32 {t[2]}, {OOB}
    v_cmp_gt_u32 vcc, 3360, {vKV}
    v_cndmask_b32 {vKV}, {t[2]}, {vKV}, vcc
    s_lshl_b32 {sKVl}, {sGI}, 16
    s_add_u32 {sKVl}, {sKVl}, s19
    s_lshl_b32 s3, {sRB}, 12
    s_add_u32 {sKVs}, {sKVl}, s3
    v_bfe_u32 {t[2]}, v0, 2, 1
    v_cmp_eq_u32 s[48:49], {t[2]}, {t[0]}
    v_lshrrev_b32 {t[2]}, 3, {t[1]}
    v_and_b32 {t[3]}, 3, v0
    v_lshl_add_u32 {t[2]}, {t[2]}, 2, {t[3]}
    v_mul_u32_u24 {t[3]}, 21, {t[0]}
    v_add_u32 {t[3]}, {t[3]}, {t[2]}
    v_mul_u32_u24 {t[3]}, 80, {t[3]}
    v_add_u32 {t[3]}, {CMP}, {t[3]}
    v_mov_b32 {t[4]}, {CMP + 3360}
    v_cndmask_b32 {vF[0]}, {t[4]}, {t[3]}, s[48:49]
    v_add_u32 {t[3]}, {16 * 80}, {vF[0]}
    v_cmp_gt_u32 vcc, 5, {t[2]}
    s_and_b64 vcc, vcc, s[48:49]
    v_cndmask_b32 {vF[1]}, {t[4]}, {t[3]}, vcc
    v_and_b32 {t[3]}, 1, {t[2]}
    v_lshlrev_b32 {t[3]}, 4, {t[3]}
    v_mov_b32 {t[4]}, 0x3f80
    v_lshlrev_b32 {t[3]}, {t[3]}, {t[4]}
    v_cndmask_b32 {t[3]}, 0, {t[3]}, s[48:49]
    v_lshrrev_b32 {t[2]}, 1, {t[2]}''')
    for j in range(4): ad(f'v_cmp_eq_u32 vcc, {j}, {t[2]}\nv_cndmask_b32 {ID[j]}, 0, {t[3]}, vcc')
    ad(f'''v_bfe_u32 {t[2]}, v0, 4, 1
    v_mul_u32_u24 {t[2]}, 20480, {t[2]}
    v_and_b32 {t[3]}, 15, v0
    v_lshl_add_u32 {t[2]}, {t[3]}, 4, {t[2]}
    v_lshl_add_u32 {vO}, {t[0]}, 9, {t[2]}
    v_lshl_add_u32 {vO2}, {t[0]}, 3, {t[2]}
    s_mul_i32 {sO1}, {sT32}, 40960
    s_add_u32 {sO1}, {sO1}, s18
    s_lshr_b32 s3, {sGI}, 2
    s_mul_i32 s3, s3, 5120
    s_add_u32 {sO1}, {sO1}, s3
    s_and_b32 s3, {sGI}, 3
    s_lshl_b32 s46, s3, 8
    s_add_u32 {sO2}, {sO1}, s46
    s_add_u32 {sO2}, {sO2}, 4096
    s_lshl_b32 s3, s3, 10
    s_add_u32 {sO1}, {sO1}, s3''')
    ep = V.get(20, 2); PK = V.get(32, 4)
    kv_ = [acc[0][i] for i in range(16)] + [acc[1][i] for i in range(4)]
    vv = [acc[1][i] for i in range(4, 16)] + [acc[2][i] for i in range(8)]
    qp = [acc[2][i:i + 2] for i in range(8, 16, 2)] + [acc[3][i:i + 2] for i in range(0, 12, 2)]
    sk = softmax_k(kv_, ep, PK, vs, t)
    for j in range(5): sk(f'ds_write_b128 {vIw}, {PK[4 * j:4 * j + 4]} offset:{16 * j}', tag='img')
    sv = Code()
    for i in range(0, 20, 4):
        for k in range(i, i + 4): sv(f'v_mul_f32 {vv[k]}, {vv[k]}, {vrs}')
        sv(f'v_cvt_pk_bf16_f32 {PK[20 + i // 2]}, {vv[i]}, {vv[i + 1]}\nv_cvt_pk_bf16_f32 {PK[21 + i // 2]}, {vv[i + 2]}, {vv[i + 3]}')
    sv(f'v_mov_b32 {PK[30]}, 0x3f80\nv_mov_b32 {PK[31]}, 0')
    for j in range(5, 8): sv(f'ds_write_b128 {vIw}, {PK[4 * j:4 * j + 4]} offset:{16 * j}', tag='img')
    steps = stream_order(4, P1_NA); N = len(steps); nA = 41 * P1_NA
    side = [(12, st.items), (20, ad.items), (nA + 2, sk.items), (nA + 41 + 2, sv.items)]
    hooks = {}
    for p in (0, nA - 1, N - 1):
        hooks[p] = Code(); mark(hooks[p])
    left = stream_gemm(c, steps, acc, lambda ks: xf[ks] if ks < 40 else bx, xload, abuf, vLds, vL, bases, sWS, 160,
                       [4, 4, 8, 16, 32, 32, 32, 32, 4], side, hooks=hooks)
    print('p1 left', len(left))
    c.wait_lg('img'); c('s_barrier')
    KV = acc[0]
    fa, fb = xf[0:8], xf[8:16]
    def rd(k):
        for rr in range(2):
            c(f'ds_read_b64_tr_b16 {fa[k][2 * rr:2 * rr + 2]}, {vA} offset:{2304 * k + 144 * rr}')
            c(f'ds_read_b64_tr_b16 {fb[k][2 * rr:2 * rr + 2]}, {vB} offset:{2304 * k + 144 * rr}')
    for k in range(3): rd(k)
    for k in range(8):
        c(f'v_mfma_f32_32x32x16_bf16 {KV}, {fa[k]}, {fb[k]}, {KV if k else 0}')
        if k + 3 < 8: rd(k + 3)
    sq = softmax_q(qp, ep, PK, vs2, t).items
    c.add(sq[:12]); sq = sq[12:]
    kp = V.get(6, 2)
    for j in range(6): c(f'v_cvt_pk_bf16_f32 {kp[j]}, {KV[2 * j]}, {KV[2 * j + 1]}')
    c(f'''s_mov_b32 exec_lo, 0x1fffff
    s_mov_b32 exec_hi, 0x1fffff''')
    c(f'ds_write_b64 {vCw}, {kp[0:2]}\nds_write_b64 {vCw}, {kp[2:4]} offset:16\ns_mov_b32 exec_hi, 0\nds_write_b64 {vCw}, {kp[4:6]} offset:32', tag='cmp')
    c('s_mov_b64 exec, -1'); c.add(sq[:10]); sq = sq[10:]
    c.wait_lg('cmp'); c('s_barrier')
    pc = V.get(4, 4)
    c(f'ds_read_b128 {pc}, {vCp}'); c.add(sq[:20]); sq = sq[20:]
    c(f'buffer_store_dwordx4 {pc}, {vKV}, {sWS}, {sKVs} offen sc1')
    mark(c)
    c.add(sq)
    mark(c)
    SUM = acc[0]
    c(f's_mov_b32 s46, 4096\ns_waitcnt lgkmcnt(0)\nP1_RETRY:\ns_mov_b32 s3, {sKVl}')
    for p in range(16):
        c(f'buffer_load_dwordx4 {xf[p]}, {vKV}, {sWS}, s3 offen sc1\ns_addk_i32 s3, 4096')
    for p in range(16): c(f'v_mfma_f32_32x32x16_bf16 {SUM}, {ID}, {xf[p]}, {SUM if p else 0}')
    c(f'''v_cmp_u_f32 vcc, {SUM[0]}, {SUM[0]}
    s_sub_u32 s46, s46, 1
    s_cselect_b64 s[48:49], 0, -1
    s_and_b64 vcc, vcc, s[48:49]
    s_cbranch_vccnz P1_RETRY''')
    mark(c)
    for j in range(4): c(f'v_cvt_pk_bf16_f32 {pc[j]}, {SUM[2 * j]}, {SUM[2 * j + 1]}')
    c(f'ds_write_b128 {vCp}, {pc}', tag='cmp2'); c.wait_lg('cmp2'); c('s_barrier')
    for k in range(5):
        for tt in range(2): c(f'ds_read_b128 {xf[16 + 2 * k + tt]}, {vF[tt]} offset:{16 * k}')
    O0, O1 = acc[0], acc[1]
    for k in range(5):
        for tt, d in ((1, O1), (0, O0)):
            c(f'v_mfma_f32_32x32x16_bf16 {d}, {xf[16 + 2 * k + tt]}, {PK[4 * k:4 * k + 4]}, {d if k else 0}')
    c(f'''v_mul_f32 {t[2]}, {fbits(1e-6)}, {t[2]}
    v_add_f32 {t[2]}, {t[2]}, {O1[4]}
    v_rcp_f32 {t[2]}, {t[2]}''')
    prs = [O1[0:2], O1[2:4]] + [O0[i:i + 2] for i in range(0, 16, 2)]
    dsts = [PK[8], PK[9]] + [PK[i] for i in range(8)]
    for p_ in prs: c(f'v_pk_mul_f32 {p_}, {p_}, {t[2:4]} op_sel:[0,0] op_sel_hi:[1,0]')
    for p_, d in zip(prs, dsts): c(f'v_cvt_pk_bf16_f32 {d}, {p_[0]}, {p_[1]}')
    c(f'''buffer_store_dwordx2 {PK[8:10]}, {vO2}, {sWS}, {sO2} offen {Opt.sc_st}
    buffer_store_dwordx4 {PK[0:4]}, {vO}, {sWS}, {sO1} offen {Opt.sc_st}
    buffer_store_dwordx4 {PK[4:8]}, {vO}, {sWS}, {sO1} offen offset:256 {Opt.sc_st}''')
    stamp(c)
    c('P1_END:\ns_endpgm')
    return c
```

```python
from common import *
RED = 0
def body(name, nks_tot, nks, WF, WG_, final_possible):
    c = Code(); V = Alloc('v', 1, 248); A = Alloc('a', 0, 256)
    c(f'{name}_BODY:')
    prologue(c, 256, f'{name}_END', extra_loads='s_load_dwordx2 s[44:45], s[0:1], 64' if final_possible else '')
    sT64, sCG, sA, sK0 = 's24', 's25', 's26', 's27'
    sB = ['s28', 's29', 's30', 's31']
    uneven = nks * 4 != nks_tot
    c(f'''s_and_b32 s3, {sIDX}, 7
    s_lshl_b32 {sT64}, {sJ}, 3
    s_add_u32 {sT64}, {sT64}, s3
    s_lshr_b32 s3, {sIDX}, 3
    s_lshl_b32 {sCG}, {sC}, 2
    s_add_u32 {sCG}, {sCG}, s3
    s_mul_i32 {sK0}, {sWAVE}, {nks}''')
    if uneven:
        c(f'''s_cmp_eq_u32 {sWAVE}, 3
        s_cselect_b32 s3, 1, 0
        s_sub_u32 {sK0}, {sK0}, s3''')
    vL = V.get(); vLo = V.get() if uneven else vL
    c(f'''v_lshlrev_b32 {vL}, 4, v0
    s_mul_i32 {sA}, {sCG}, {WG_}
    s_mul_i32 s3, {sK0}, 5120
    s_add_u32 {sA}, {sA}, s3
    s_add_u32 {sA}, {sA}, {WF}
    s_lshl_b32 s32, {sK0}, 10
    s_add_u32 s32, s32, s16''')
    for i in range(4):
        c(f'''s_add_u32 s3, {sWAVE}, {i + 1}
        s_and_b32 s3, s3, 3
        s_lshl_b32 s33, {sT64}, 2
        s_add_u32 s3, s3, s33
        s_mul_i32 s3, s3, {nks_tot * 1024}
        s_add_u32 {sB[i]}, s3, s32''')
    if uneven:
        c(f'''s_cmp_ge_u32 {sWAVE}, 2
        s_cselect_b32 s3, {OOB}, 0
        v_add_u32 {vLo}, s3, {vL}''')
    c('s_waitcnt lgkmcnt(0)')
    nfr = nks * 5
    af = []
    for n in range(nfr):
        af.append(A.get(4, 4) if n < 64 else V.get(4, 4))
    NBB = min(4 * nks, 20)
    bb = [(A.get(4, 4) if nfr + k < 64 else V.get(4, 4)) for k in range(NBB)]
    acc = [V.get(20, 4), V.get(20, 4)]
    res = V.get(10, 2)
    ops = []
    def aload(n):
        cc = Code()
        if n and n % 4 == 0: cc(f's_addk_i32 {sA}, 4096')
        va = vLo if n // 5 == nks - 1 else vL
        cc(f'buffer_load_dwordx4 {af[n]}, {va}, {sWS}, {sA} offen offset:{(n % 4) * 1024}')
        return cc
    def bload(i, k):
        cc = Code()
        if k and k % 4 == 0: cc(f's_addk_i32 {sB[i]}, 4096')
        va = vLo if k == nks - 1 else vL
        cc(f'buffer_load_dwordx4 {bb[(i * nks + k) % NBB]}, {va}, {sWS}, {sB[i]} offen offset:{(k % 4) * 1024} {Opt.sc_ld}')
        return cc
    for k in range(nks):
        ops.append((k * 5, bload(0, k), 0))
        for t in range(5): ops.append((k * 5 + t, aload(k * 5 + t), 0))
    vXa = V.get(); t0 = V.get(); t1 = V.get()
    pre = Code()
    pre(f'''v_and_b32 {t0}, 15, v0
    v_lshlrev_b32 {t0}, 4, {t0}
    v_bfe_u32 {t1}, v0, 4, 1
    v_lshl_add_u32 {t0}, {t1}, 9, {t0}
    s_lshl_b32 s33, {sT64}, 1
    s_lshr_b32 s3, {sWAVE}, 1
    s_add_u32 s33, s33, s3                 ; T32
    s_mul_i32 s34, s33, 40960
    s_mul_i32 s35, {sCG}, 5120
    s_add_u32 s34, s34, s35
    s_and_b32 s3, {sWAVE}, 1
    s_lshl_b32 s3, s3, 8
    s_add_u32 s34, s34, s3
    v_lshrrev_b32 {t1}, 5, v0
    v_lshl_add_u32 {vXa}, {t1}, 3, {t0}
    s_add_u32 s35, s34, s17''')
    rl = Code()
    for t in range(5):
        if t == 4: rl('s_addk_i32 s35, 4096')
        rl(f'buffer_load_dwordx2 {res[2 * t:2 * t + 2]}, {vXa}, {sWS}, s35 offen offset:{(t % 4) * 1024} {Opt.sc_ld}')
    for i in range(1, 4):
        for k in range(nks):
            n = i * nks + k
            ops.append((n * 5, bload(i, k), max(0, (n - NBB + 1) * 5)))
        if i == 2: ops.append(((3 * nks) * 5, rl, 0))
    vW = V.get(3); vR = V.get()
    for i in range(3):
        pre(f'''s_add_u32 s3, {sWAVE}, {i + 1}
        s_and_b32 s3, s3, 3
        s_mul_i32 s3, s3, 15360
        s_add_u32 s3, s3, {RED + i * 5120}
        v_add_u32 {vW[i]}, s3, {vL}''')
    pre(f'''s_mul_i32 s3, {sWAVE}, 15360
    s_add_u32 s3, s3, {RED}
    v_add_u32 {vR}, s3, {vL}''')
    N = 4 * nks * 5
    side = []
    for i in range(3):
        e = Code()
        for t in range(5): e(f'ds_write_b128 {vW[i]}, {acc[i & 1][4 * t:4 * t + 4]} offset:{t * 1024}', tag='red')
        side.append(((i + 1) * nks * 5 + 3, e.items))
    part = [V.get(20, 4), acc[0]]
    tot = part[0]
    e = Code()
    e.wait_lg('red'); e('s_barrier')
    for t in range(5): e(f'ds_read_b128 {part[0][4 * t:4 * t + 4]}, {vR} offset:{t * 1024}')
    for t in range(5): e(f'ds_read_b128 {part[1][4 * t:4 * t + 4]}, {vR} offset:{5120 + t * 1024}')
    for r_ in range(20): e(f'v_add_f32 {tot[r_]}, {tot[r_]}, {part[1][r_]}')
    for t in range(5): e(f'ds_read_b128 {part[1][4 * t:4 * t + 4]}, {vR} offset:{10240 + t * 1024}')
    for r_ in range(10):
        e(f'''v_lshlrev_b32 {t0}, 16, {res[r_]}
        v_and_b32 {t1}, 0xffff0000, {res[r_]}
        v_add_f32 {tot[2 * r_]}, {tot[2 * r_]}, {t0}
        v_add_f32 {tot[2 * r_ + 1]}, {tot[2 * r_ + 1]}, {t1}''')
    for r_ in range(20): e(f'v_add_f32 {tot[r_]}, {tot[r_]}, {part[1][r_]}')
    side.append((3 * nks * 5 + 3 + Opt.P4_BARDELAY, e.items))
    issued = 0
    def try_issue(p, burst):
        nonlocal issued
        n = 0; cy = 0
        while issued < len(ops):
            need, cc, after = ops[issued]
            force = need <= p + 1
            if not force:
                if n >= burst: break
                if sum(1 for o in ops[:issued] if o[0] > p) >= Opt.P4_LA: break
            if after > p + 1:
                assert not force; break
            c.add(cc); issued += 1; n += 1; cy += sum(cost(x) for x in cc.items)
        return cy
    try_issue(-1, Opt.P4_LA)
    c.add(pre)
    mark(c)
    side = [(a, list(it)) for a, it in side]
    for p in range(N):
        i, k, t = p // (nks * 5), (p // 5) % nks, p % 5
        d = acc[i & 1][4 * t:4 * t + 4]
        c(f'v_mfma_f32_16x16x32_bf16 {d}, {af[k * 5 + t]}, {bb[(i * nks + k) % NBB]}, {d if k else 0}')
        cy = try_issue(p, 2 if i == 0 else 1)
        while side and p >= side[0][0]:
            it = side[0][1]
            if not it: side.pop(0); continue
            if cy and cy + cost(it[0]) > 8.5: break
            cy += cost(it[0]); c.add(it.pop(0))
        if p % (nks * 5) == nks * 5 - 1: mark(c)
    left = [x for a, it in side for x in it]
    print(name, 'left', len(left)); c.add(left)
    fin = acc[1]; P = res
    vS = V.get()
    c(f'''v_lshrrev_b32 {t1}, 5, v0
    v_lshlrev_b32 {t0}, 3, {t1}
    v_sub_u32 {vS}, {vXa}, {t0}
    v_lshl_add_u32 {vS}, {t1}, 10, {vS}''')
    for r_ in range(0, 20, 2): c(f'v_pk_add_f32 {tot[r_:r_ + 2]}, {tot[r_:r_ + 2]}, {fin[r_:r_ + 2]}')
    Q = [V.get(4, 4), V.get(4, 4)]
    dst = {0: Q[0][0], 1: Q[0][1], 2: Q[0][2], 3: Q[0][3], 4: Q[1][0], 5: Q[1][1], 6: Q[1][2], 7: Q[1][3], 8: P[8], 9: P[9]}
    for r_ in range(10): c(f'v_cvt_pk_bf16_f32 {dst[r_]}, {tot[2 * r_]}, {tot[2 * r_ + 1]}')
    if final_possible:
        c(f'''s_cmp_eq_u32 s20, 1
        s_cbranch_scc1 {name}_FINAL''')
    s0, s1 = V.get(2, 2), V.get(2, 2)
    c(f's_mov_b32 s3, 0x3f803f80\nv_mov_b32 {s0[0]}, 0\nv_mov_b32 {s0[1]}, 0')
    for r_ in range(10):
        c(f'v_dot2_f32_bf16 {s0[0]}, {dst[r_]}, s3, {s0[0]}\nv_dot2_f32_bf16 {s0[1]}, {dst[r_]}, {dst[r_]}, {s0[1]}')
    for q in Q: c(f'v_permlane32_swap_b32 {q[0]}, {q[2]}\nv_permlane32_swap_b32 {q[1]}, {q[3]}')
    c(f'''s_add_u32 s35, s34, s18
    buffer_store_dwordx4 {Q[0]}, {vS}, {sWS}, s35 offen {Opt.sc_st}
    buffer_store_dwordx4 {Q[1]}, {vS}, {sWS}, s35 offen offset:2048 {Opt.sc_st}
    s_addk_i32 s35, 4096
    buffer_store_dwordx2 {P[8:10]}, {vXa}, {sWS}, s35 offen {Opt.sc_st}''')
    for sw in ('v_permlane16_swap_b32', 'v_permlane32_swap_b32'):
        c(f'''v_mov_b32 {s1[0]}, {s0[0]}
        v_mov_b32 {s1[1]}, {s0[1]}
        {sw} {s0[0]}, {s1[0]}
        {sw} {s0[1]}, {s1[1]}
        v_add_f32 {s0[0]}, {s0[0]}, {s1[0]}
        v_add_f32 {s0[1]}, {s0[1]}, {s1[1]}''')
    c(f'''s_lshl_b32 s33, s33, 11
    s_lshr_b32 s3, {sCG}, 1
    s_lshl_b32 s3, s3, 9
    s_add_u32 s33, s33, s3
    s_and_b32 s3, {sCG}, 1
    s_lshl_b32 s3, s3, 3
    s_add_u32 s33, s33, s3
    s_and_b32 s3, {sWAVE}, 1
    s_lshl_b32 s3, s3, 8
    s_add_u32 s33, s33, s3
    s_add_u32 s33, s33, s19
    s_mov_b64 exec, 0xffff
    buffer_store_dwordx2 {s0}, {vL}, {sWS}, s33 offen {Opt.sc_st}''')
    stamp(c)
    c(f'{name}_END:\ns_endpgm')
    if final_possible:
        c(f'{name}_FINAL:')
        for q in Q: c(f'v_permlane32_swap_b32 {q[0]}, {q[2]}\nv_permlane32_swap_b32 {q[1]}, {q[3]}')
        c(f'''s_mov_b32 s46, {S * D * 2}
        s_mov_b32 s47, 0x20000
        v_and_b32 {t0}, 15, v0
        v_mul_u32_u24 {t0}, 1280, {t0}
        v_bfe_u32 {t1}, v0, 4, 1
        v_lshl_add_u32 {t0}, {t1}, 4, {t0}
        v_lshrrev_b32 {t1}, 5, v0
        v_lshl_add_u32 {vS}, {t1}, 5, {t0}
        v_lshl_add_u32 {vXa}, {t1}, 3, {t0}
        s_lshl_b32 s3, {sT64}, 2
        s_add_u32 s3, s3, {sWAVE}
        s_mul_i32 s3, s3, {16 * 1280}
        s_mul_i32 s35, {sCG}, 160
        s_add_u32 s35, s35, s3
        buffer_store_dwordx4 {Q[0]}, {vS}, s[44:47], s35 offen
        buffer_store_dwordx4 {Q[1]}, {vS}, s[44:47], s35 offen offset:64
        buffer_store_dwordx2 {P[8:10]}, {vXa}, s[44:47], s35 offen offset:128''')
        stamp(c)
        c('s_endpgm')
    return c
def p2_body(): return body('P2', 20, 5, WOF, WOG, False)
def p4_body(): return body('P4', 54, 14, WDF, WDG, True)
```

```python
from common import *
def p3_body():
    c = Code(); V = Alloc('v', 1, 248); A = Alloc('a', 0, 256)
    c('P3_BODY:')
    prologue(c, 256, 'P3_END')
    sG, sT32 = 's24', 's25'
    bases = {4: ('s26', 's27'), 8: ('s28', 's29'), 16: ('s30', 's31'), 32: ('s42', 's43')}
    srdW = 's[36:39]'; sXo = 's32'
    c(f'''s_and_b32 s3, {sIDX}, 3
    s_lshl_b32 {sT32}, {sJ}, 2
    s_add_u32 {sT32}, {sT32}, s3
    s_lshl_b32 {sT32}, {sT32}, 2
    s_add_u32 {sT32}, {sT32}, {sWAVE}
    s_lshr_b32 s3, {sIDX}, 2
    s_lshl_b32 s33, {sC}, 3
    s_add_u32 s33, s33, s3                 ; group 0..15
    s_mul_i32 {sG}, s33, {W3G}
    s_add_u32 {sG}, {sG}, {W3F}''')
    wave_bases(c, sG, bases)
    vL = V.get(); vLds = V.get(3); vX = vL
    c(f'''v_lshlrev_b32 {vL}, 4, v0
    v_mov_b32 {vLds[0]}, {vL}
    v_add_u32 {vLds[1]}, 0x10000, {vL}
    v_add_u32 {vLds[2]}, 0x20000, {vL}
    s_mul_i32 {sXo}, {sT32}, 40960
    s_add_u32 {sXo}, {sXo}, s16
    s_mov_b32 s38, {W3F + 15 * W3G + 123 * 1024}
    s_mov_b32 s39, 0x20000
    s_waitcnt lgkmcnt(0)
    s_mov_b32 s36, s8
    s_mov_b32 s37, s9''')
    red = load_stats(c, V, 's17', sT32, 'v0')
    xf = [A.get(4, 4) for _ in range(40)]
    abuf = [A.get(4, 4) for _ in range(Opt.RA + 2)]
    acc = [V.get(16, 4) for _ in range(7)]
    bx = V.get(4, 4); vvar = V.get(); va = V.get(); vb = V.get()
    def xload(cc, ks):
        if ks == 40: return
        if ks and ks % 4 == 0: cc(f's_addk_i32 {sXo}, 4096')
        cc(f'buffer_load_dwordx4 {xf[ks]}, {vX}, {sWS}, {sXo} offen offset:{(ks % 4) * 1024} {Opt.sc_ld}')
    vH = V.get(); vH2 = V.get(); t0 = V.get(); t1 = V.get()
    pre = Code()
    pre(f'''v_bfe_u32 {t0}, v0, 4, 1
    v_mul_u32_u24 {t0}, 55296, {t0}
    v_lshrrev_b32 {t1}, 5, v0
    v_lshl_add_u32 {t0}, {t1}, 8, {t0}
    v_and_b32 {t1}, 15, v0
    v_lshl_add_u32 {t0}, {t1}, 4, {t0}
    s_mul_i32 s34, {sT32}, {2 * 55296}
    s_mul_i32 s35, s33, {7 * 512}
    s_add_u32 s34, s34, s35
    s_add_u32 s34, s34, s18
    v_add_u32 {vH}, s34, {t0}
    s_cmp_eq_u32 s33, 15
    s_cselect_b32 s35, {OOB}, 0
    v_add_u32 {vH2}, s35, {vH}''')
    V.put(t0); V.put(t1)
    st = Code(); red(st, bx, vvar)
    K = -2.0 * math.sqrt(2.0 / math.pi) * LOG2E
    st(f'''v_rsq_f32 {vb}, {vvar}
    v_mul_f32 {va}, {fbits(K)}, {vb}
    v_mul_f32 {vb}, {vb}, {vb}
    v_mul_f32 {vb}, {fbits(0.044715)}, {vb}
    v_mul_f32 {vb}, {va}, {vb}''')
    tmp = V.get(4); hp = [V.get(4, 4), V.get(4, 4)]
    def epi(j):
        e = Code(); a = acc[j]; h = hp[j & 1]
        for p in range(0, 8, 4):
            G = [a[p + i] for i in range(4)]; U = [a[8 + p + i] for i in range(4)]; t = tmp
            for i in range(4): e(f'v_mul_f32 {t[i]}, {G[i]}, {G[i]}')
            for i in range(4): e(f'v_fma_f32 {t[i]}, {t[i]}, {vb}, {va}')
            for i in range(4): e(f'v_mul_f32 {t[i]}, {t[i]}, {G[i]}')
            for i in range(4): e(f'v_exp_f32 {t[i]}, {t[i]}\nv_mul_f32 {U[i]}, {G[i]}, {U[i]}')
            for i in range(4): e(f'v_fma_f32 {t[i]}, {t[i]}, {vvar}, {vvar}')
            for i in range(4): e(f'v_rcp_f32 {t[i]}, {t[i]}')
            for i in range(4): e(f'v_mul_f32 {U[i]}, {U[i]}, {t[i]}')
            for i in range(0, 4, 2): e(f'v_cvt_pk_bf16_f32 {h[(p + i) // 2]}, {U[i]}, {U[i + 1]}')
        e(f'buffer_store_dwordx4 {h}, {vH if j < 3 else vH2}, {sWS}, 0 offen offset:{j * 512} {Opt.sc_st}')
        return e.items
    steps = stream_order(7, P3_NA); N = len(steps)
    nA = 41 * P3_NA
    side = [(12, st.items)]
    for j in range(6):
        ready = (nA if j < P3_NA else nA + (j - P3_NA + 1) * 41) + 2
        if 'noepi' not in Opt.abl: side.append((ready, epi(j)))
    hooks = {}
    for p in (0, 60, nA - 1, nA + 40, nA + 81):
        hooks[p] = Code(); mark(hooks[p])
    left = stream_gemm(c, steps, acc, lambda ks: xf[ks] if ks < 40 else bx, xload, abuf, vLds, vL, bases, srdW, 160,
                Opt.chunks3, side, pre=pre, hooks=hooks)
    print('p3 left', len(left))
    mark(c)
    c.add(epi(6))
    stamp(c, 0)
    c('P3_END:\ns_endpgm')
    return c
```

```python
S, D, H, DH, F = 2048, 640, 32, 20, 1728
_cur = 0
def _al(n, a=65536):
    global _cur
    o = _cur; _cur = (_cur + n + a - 1) // a * a
    return o
XB = 64 * 40 * 1024
X = [_al(XB) for _ in range(4)]
ST = [_al(64 * 2048) for _ in range(4)]
O = [_al(128 * 20 * 1024) for _ in range(2)]
HB = [_al(128 * 54 * 1024) for _ in range(2)]
W1G = 164 * 1024
W1F = _al(16 * W1G)
WOG = 100 * 1024
WOF = _al(8 * WOG)
W3G = 287 * 1024
W3F = _al(16 * W3G)
WDG = 270 * 1024
WDF = _al(8 * WDG)
KVP = [_al(256 * 4096) for _ in range(2)]
STAMP = _al(1 << 20)
WS_USED = _cur

P1_NA = 2
P3_NA = 3
def stream_order(ntiles, na):
    o = [(t, ks) for ks in range(41) for t in range(na)]
    o += [(t, ks) for t in range(na, ntiles) for ks in range(41)]
    return o
def stream_pos(t, ks, na):
    return ks * na + t if t < na else 41 * na + (t - na) * 41 + ks
```

```python
import sys
from common import *
import p3
NAME = 'interleave_layers__linear_kernel_hedgehog__geglu_ffn__prompt'
def build(launches, stamps=False):
    Opt.stamps = stamps
    allk = {}
    bodies = {}
    def reg(name, params, body, fn, grid, lds, vg=256, ag=256):
        allk[name] = (params, body, fn, grid, lds, vg, ag)
    for l in range(2):
        reg(f'p3l{l}_kernel', {'s16': X[2 * l + 1], 's17': ST[2 * l + 1], 's18': HB[l], 's77': 3 + 4 * l}, 'P3_BODY', p3.p3_body, 256, 163840)
    try:
        import p24
        for l in range(2):
            reg(f'p2l{l}_kernel', {'s16': O[l], 's17': X[2 * l], 's18': X[2 * l + 1], 's19': ST[2 * l + 1], 's77': 2 + 4 * l}, 'P2_BODY', p24.p2_body, 256, 61440)
        reg('p4l0_kernel', {'s16': HB[0], 's17': X[1], 's18': X[2], 's19': ST[2], 's20': 0, 's77': 4}, 'P4_BODY', p24.p4_body, 256, 61440)
        reg('p4l1_kernel', {'s16': HB[1], 's17': X[3], 's18': 0, 's19': 0, 's20': 1, 's77': 8}, 'P4_BODY', p24.p4_body, 256, 61440)
    except ImportError: pass
    try:
        import p1
        for l in range(2):
            reg(f'p1l{l}_kernel', {'s16': X[2 * l], 's17': ST[2 * l], 's18': O[l], 's19': KVP[l], 's77': 1 + 4 * l}, 'P1_BODY', p1.p1_body, 256, 163840)
    except ImportError: pass
    try:
        import k0
        reg('k0_kernel', {'s77': 0}, 'K0_BODY', k0.k0_body, k0.NWG, k0.LDS, 256, 0)
    except ImportError: pass
    def nopfn():
        c = Code(); c('NOP_BODY:\ns_endpgm'); return c
    reg('nop_kernel', {}, 'NOP_BODY', nopfn, 256, 0, 256, 0)
    hdr = ''.join(f'; @launch kernel={n} grid=({allk[n][3]},1,1) block=(256,1,1) lds={allk[n][4]}\n' for n in launches)
    txt = '.amdgcn_target "amdgcn-amd-amdhsa--gfx950"\n.text\n'
    names = list(dict.fromkeys(launches))
    info = {}
    for n in names:
        params, body, fn, *_ = allk[n]
        txt += entry(n, params, body)
        if body not in bodies:
            t, items, nn = finalize(fn()); bodies[body] = t; info[body] = (len(items), nn)
            txt += '.p2align 6\n' + t
    txt += '.section .rodata,"a"\n'
    for n in names: txt += kd(n, allk[n][5], allk[n][6])
    return hdr + txt, info
FULL = ['k0_kernel'] + [f'p{p}l{l}_kernel' for l in range(2) for p in (1, 2, 3, 4)]
if __name__ == '__main__':
    ls = sys.argv[2].split(',') if len(sys.argv) > 2 else FULL
    s, info = build(ls, stamps=len(sys.argv) > 3)
    open(sys.argv[1], 'w').write(s)
    print(info, len(s))
```

```python
import re

REG = re.compile(r'(?<![\w.])(-|abs\()?([vas])(?:(\d+)|\[(\d+):(\d+)\])')

def regs_of(tok):
    out = []
    for m in REG.finditer(tok):
        k = m.group(2)
        if m.group(3) is not None:
            out.append((k, int(m.group(3))))
        else:
            out += [(k, i) for i in range(int(m.group(4)), int(m.group(5)) + 1)]
    if re.search(r'\bvcc\b', tok): out.append(('x', 'vcc'))
    if re.search(r'\bexec(_lo|_hi)?\b', tok): out.append(('x', 'exec'))
    if re.search(r'\bm0\b', tok): out.append(('x', 'm0'))
    return out

TRANS = ('v_exp_f32', 'v_log_f32', 'v_rcp_f32', 'v_rsq_f32', 'v_sqrt_f32', 'v_sin_f32', 'v_cos_f32')

class I:
    __slots__ = ('text', 'mn', 'kind', 'defs', 'uses', 'passes', 'srcc', 'srcab', 'wide', 'tag', 'data')
    def __init__(self, text, tag=None):
        self.text = text.strip()
        self.tag = tag
        self.passes = 0; self.srcc = []; self.srcab = []; self.wide = False; self.data = []
        t = self.text.split(';')[0].strip()
        if t.endswith(':'):
            self.mn = t; self.kind = 'label'; self.defs = []; self.uses = []; return
        sp = t.split(None, 1)
        mn = sp[0]; self.mn = mn
        rest = sp[1] if len(sp) > 1 else ''
        ops = [o.strip() for o in rest.split(',')] if rest else []
        R = [regs_of(o) for o in ops]
        flat = lambda l: [x for y in l for x in y]
        d = []; u = []
        if mn.startswith('v_mfma'):
            self.kind = 'mfma'
            self.passes = 8 if '32x32' in mn else 4
            d = R[0]; self.srcab = R[1] + R[2]; self.srcc = R[3]; u = self.srcab + self.srcc
        elif mn.startswith('buffer_load') or mn.startswith('global_load'):
            if re.search(r'\blds\b', t) or '_lds_' in mn:
                self.kind = 'dma'; u = flat(R) + [('x', 'm0')]
            else:
                self.kind = 'vload'; d = R[0]; u = flat(R[1:])
        elif mn.startswith('buffer_store'):
            self.kind = 'vstore'; u = flat(R); self.data = R[0]
            self.wide = mn.endswith('x3') or mn.endswith('x4')
        elif mn.startswith('global_store'):
            self.kind = 'vstore'; u = flat(R); self.data = R[1]
            self.wide = mn.endswith('x3') or mn.endswith('x4')
        elif mn.startswith('buffer_atomic') or mn.startswith('global_atomic'):
            if re.search(r'\bsc0\b', t):
                self.kind = 'vload'; d = R[0]; u = flat(R)
            else:
                self.kind = 'vstore'; u = flat(R)
        elif mn.startswith('buffer_inv') or mn.startswith('buffer_wbl2'):
            self.kind = 'vstore'
        elif mn.startswith('ds_read') or mn.startswith('ds_bpermute') or mn.startswith('ds_swizzle'):
            self.kind = 'dsread'; d = R[0]; u = flat(R[1:])
        elif mn.startswith('ds_write'):
            self.kind = 'dswrite'; u = flat(R)
        elif mn.startswith('s_load') or mn.startswith('s_memtime') or mn.startswith('s_memrealtime'):
            self.kind = 'smem'; d = R[0]; u = flat(R[1:])
        elif mn == 's_waitcnt': self.kind = 'wait'
        elif mn == 's_barrier': self.kind = 'barrier'
        elif mn == 's_nop': self.kind = 'nop'
        elif mn.startswith('s_cbranch') or mn == 's_branch' or mn == 's_endpgm' or mn.startswith('s_setpc'):
            self.kind = 'branch'
            if 'vcc' in mn: u = [('x', 'vcc')]
            if 'exec' in mn: u = [('x', 'exec')]
        elif mn.startswith('s_cmp') or mn in ('s_setprio', 's_sleep'):
            self.kind = 'salu'; u = flat(R)
        elif mn.startswith('s_'):
            self.kind = 'salu'; d = R[0] if R else []; u = flat(R[1:])
            if 'saveexec' in mn: d = d + [('x', 'exec')]
            if mn.startswith('s_addk') or mn.startswith('s_mulk'): u = u + d
        elif mn.startswith('v_'):
            self.kind = 'trans' if mn.replace('_e32', '').replace('_e64', '') in TRANS else 'valu'
            if mn.startswith('v_permlane') and 'swap' in mn:
                d = R[0] + R[1]; u = R[0] + R[1]
            elif mn.startswith('v_add_co') or mn.startswith('v_sub_co') or mn.startswith('v_addc_co'):
                d = R[0] + R[1]; u = flat(R[2:])
            else:
                d = R[0]; u = flat(R[1:])
                if mn.startswith('v_fmac') or mn.startswith('v_dot2c') or 'dpp' in t or 'row_' in t or 'quad_perm' in t:
                    u = u + d
        else:
            raise ValueError('unparsed: ' + text)
        self.defs = d; self.uses = u
    def is_valu(self): return self.kind in ('valu', 'trans')
    def is_dpp(self): return ('row_' in self.text or 'quad_perm' in self.text) and self.is_valu()
    def __repr__(self): return self.text

class Wait:
    def __init__(self, kind, tags): self.kind = kind; self.tags = tags if isinstance(tags, (list, tuple, set)) else [tags]

class Reset:
    pass

class Group:
    tag = None
    def __init__(self, code): self.items = list(code.items)

class Code:
    def __init__(self):
        self.items = []
    def __call__(self, text, tag=None):
        for line in text.split('\n'):
            line = line.strip()
            if not line or line.startswith(';'): continue
            self.items.append(I(line, tag))
        return self
    def add(self, it):
        if isinstance(it, (list, tuple)):
            for x in it: self.add(x)
        elif isinstance(it, (Code, Group)): self.items += it.items
        else: self.items.append(it)
    def wait_vm(self, tags): self.items.append(Wait('vm', tags))
    def wait_lg(self, tags): self.items.append(Wait('lg', tags))

def overlap(a, b):
    return bool(set(a) & set(b))

def insert_waits(items):
    out = []; vm = []; lg = []
    def emit(nvm, nlg):
        parts = []
        if nvm is not None: parts.append('vmcnt(%d)' % nvm)
        if nlg is not None: parts.append('lgkmcnt(%d)' % nlg)
        if out and isinstance(out[-1], I) and out[-1].kind == 'wait':
            prev = out.pop()
            m = re.search(r'vmcnt\((\d+)\)', prev.text)
            if m: nvm = int(m.group(1)) if nvm is None else min(nvm, int(m.group(1)))
            m = re.search(r'lgkmcnt\((\d+)\)', prev.text)
            if m: nlg = int(m.group(1)) if nlg is None else min(nlg, int(m.group(1)))
            parts = []
            if nvm is not None: parts.append('vmcnt(%d)' % nvm)
            if nlg is not None: parts.append('lgkmcnt(%d)' % nlg)
        out.append(I('s_waitcnt ' + ' '.join(parts)))
    def need(q, pred):
        idx = -1
        for i, o in enumerate(q):
            if pred(o): idx = i
        return idx
    for it in items:
        if isinstance(it, Reset):
            vm = []; lg = []; continue
        if isinstance(it, Wait):
            q = vm if it.kind == 'vm' else lg
            idx = need(q, lambda o: o.tag in it.tags)
            if idx >= 0:
                n = len(q) - 1 - idx
                if it.kind == 'vm':
                    emit(n, None); vm = vm[idx + 1:]
                else:
                    if any(o.kind == 'smem' for o in lg): n = 0; idx = len(q) - 1
                    n = min(n, 15); emit(None, n); lg = lg[len(lg) - n:] if n else []
            continue
        if it.kind == 'wait':
            m = re.search(r'vmcnt\((\d+)\)', it.text)
            if m:
                n = int(m.group(1)); vm = vm[len(vm) - n:] if 0 < n < len(vm) else ([] if n == 0 else vm)
            m = re.search(r'lgkmcnt\((\d+)\)', it.text)
            if m:
                n = int(m.group(1)); lg = lg[len(lg) - n:] if 0 < n < len(lg) else ([] if n == 0 else lg)
            out.append(it); continue
        touch = set(it.defs) | set(it.uses)
        nvm = nlg = None
        idx = need(vm, lambda o: bool(touch & set(o.defs)))
        if idx >= 0: nvm = len(vm) - 1 - idx; vm = vm[idx + 1:]
        idx = need(lg, lambda o: bool(touch & set(o.defs)))
        if idx >= 0:
            nlg = len(lg) - 1 - idx
            if any(o.kind == 'smem' for o in lg): nlg = 0
            nlg = min(nlg, 15); lg = lg[len(lg) - nlg:] if nlg else []
        if it.kind in ('vload', 'vstore', 'dma') and len(vm) >= 63:
            n = 62 if nvm is None else min(nvm, 62); nvm = n; vm = vm[len(vm) - n:]
        if it.kind in ('dsread', 'dswrite') and len(lg) >= 15:
            if any(o.kind == 'smem' for o in lg): n = 0
            else: n = 14 if nlg is None else min(nlg, 14)
            nlg = n; lg = lg[len(lg) - n:] if n else []
        if nvm is not None or nlg is not None: emit(nvm, nlg)
        out.append(it)
        if it.kind in ('vload', 'vstore', 'dma'): vm.append(it)
        if it.kind in ('dsread', 'dswrite', 'smem'): lg.append(it)
    return out

def states(it):
    if it.kind == 'label': return 0
    if it.kind == 'nop': return int(it.text.split()[1], 0) + 1
    return 1

def required(p, c):
    n = 0
    pv = [r for r in p.defs if r[0] in 'va']
    ps = [r for r in p.defs if r[0] == 's' or r == ('x', 'vcc')]
    if p.is_valu():
        if c.kind == 'mfma' and overlap(pv, c.uses): n = max(n, 2)
        if c.mn.startswith('v_permlane') and overlap(pv, c.uses): n = max(n, 2)
        if c.is_dpp() and overlap(pv, c.uses): n = max(n, 2)
        if (c.mn.startswith('v_readlane') or c.mn.startswith('v_readfirstlane')) and overlap(pv, c.uses): n = max(n, 1)
        if ps:
            if c.is_valu() and overlap(ps, c.uses):
                n = max(n, 4 if c.mn.startswith(('v_readlane', 'v_writelane')) else 2)
            if c.kind in ('vload', 'vstore', 'dma') and overlap(ps, c.uses): n = max(n, 5)
            if c.kind in ('salu', 'branch', 'smem') and overlap(ps, c.uses): n = max(n, 4)
        if p.kind == 'trans' and c.kind in ('valu',) and overlap(pv, c.uses): n = max(n, 1)
        if p.kind == 'trans' and c.kind in ('vstore', 'dswrite') and overlap(pv, c.uses): n = max(n, 1)
        if p.mn.startswith('v_dot') and c.kind != 'label':
            if overlap(pv, c.uses + c.defs):
                same = c.mn == p.mn
                if same:
                    ab = regs_of(','.join(c.text.split(',')[1:3]))
                    if overlap(pv, ab): n = max(n, 3)
                else: n = max(n, 3)
        if p.mn.startswith('v_cmpx'):
            raise ValueError('v_cmpx not modelled')
    if p.kind == 'mfma':
        P = p.passes
        if c.kind == 'mfma':
            if overlap(p.defs, c.srcab): n = max(n, {4: 8, 8: 12}[P])
            if overlap(p.defs, c.srcc):
                if not (c.srcc == p.defs and c.passes == P): n = max(n, {4: 6, 8: 10}[P])
            elif overlap(p.defs, c.defs): n = max(n, {4: 6, 8: 10}[P])
        elif c.kind in ('valu', 'trans', 'vload', 'vstore', 'dma', 'dsread', 'dswrite'):
            if overlap(p.defs, c.uses + c.defs): n = max(n, {4: 8, 8: 12}[P])
            if c.is_valu() and overlap(p.srcc, c.defs): n = max(n, {4: 3, 8: 7}[P])
    if p.kind == 'vstore' and p.wide and overlap(p.data, c.defs):
        n = max(n, 2 if c.is_valu() else 1)
    if p.kind == 'salu' and ('x', 'm0') in p.defs and c.kind == 'dma': n = max(n, 1)
    if p.kind == 'salu' and ('x', 'exec') in p.defs and c.is_dpp(): n = max(n, 2)
    return n

def insert_nops(items):
    out = []
    nnops = 0
    for c in items:
        need = 0; dist = 0
        for p in reversed(out):
            if dist >= 20: break
            r = required(p, c)
            if r - dist > need: need = r - dist
            dist += states(p)
        if need > 0:
            nnops += need
            while need > 0:
                k = min(need, 16); out.append(I('s_nop %d' % (k - 1))); need -= k
        out.append(c)
    return out, nnops

def finalize(code):
    items = insert_waits(code.items)
    items, nn = insert_nops(items)
    txt = '\n'.join((it.text if it.kind == 'label' else '  ' + it.text) for it in items) + '\n'
    return txt, items, nn

class Alloc:
    def __init__(self, kind, lo, hi):
        self.kind = kind; self.free = set(range(lo, hi)); self.hw = lo
    def get(self, n=1, align=None):
        align = align or (1 if n == 1 else 2)
        for b in sorted(self.free):
            if b % align == 0 and all((b + i) in self.free for i in range(n)):
                for i in range(n): self.free.discard(b + i)
                self.hw = max(self.hw, b + n)
                return Rg(self.kind, b, n)
        raise RuntimeError('out of %s registers (need %d)' % (self.kind, n))
    def put(self, r):
        for i in range(r.n):
            assert (r.b + i) not in self.free
            self.free.add(r.b + i)

class Rg:
    def __init__(self, k, b, n): self.k = k; self.b = b; self.n = n
    def __getitem__(self, i):
        if isinstance(i, slice):
            a = i.start or 0; e = self.n if i.stop is None else i.stop
            assert 0 <= a < e <= self.n
            return Rg(self.k, self.b + a, e - a)
        assert 0 <= i < self.n
        return Rg(self.k, self.b + i, 1)
    def __str__(self):
        return '%s%d' % (self.k, self.b) if self.n == 1 else '%s[%d:%d]' % (self.k, self.b, self.b + self.n - 1)
    __repr__ = __str__
    def __format__(self, spec): return str(self)
```

```python
from asmlib import *
from wsmap import *
import struct, math
def fbits(x): return '0x%08x' % struct.unpack('<I', struct.pack('<f', x))[0]
LOG2E = 1.4426950408889634

sWS = 's[8:11]'
sWAVE = 's12'
sJ, sC, sIDX = 's13', 's14', 's15'
OOB = 0x40000000

class Opt:
    stamps = False
    badmap = False
    sc_st = ''
    sc_ld = ''
    abl = set()
    LA = 40
    LA0 = 9
    RA = 6
    DIST = 28
    WG = 2
    BUD = 24
    RAMP = 10
    P4_LA = 8
    P4_LA0 = 6
    P2_LA0 = 12
    PSLEEP = 2
    WO0 = 84
    WOS = 2
    W3A = 10
    WD2 = 12
    WD2S = 45
    WD3A = 20
    WD3S = 7
    PUBE = 12
    PUBL = 30
    PLI = 92
    PLC = 116
    W1S = 215
    W1D = 3
    P4_BARDELAY = 12
    chunks3 = [4, 4, 8, 16, 32]

def prologue(c, nwg, endlabel, vlane='v0', extra_loads=''):
    c(f'''s_cmp_ge_u32 s2, {nwg}
    s_cbranch_scc1 {endlabel}''')
    if Opt.stamps: c('s_memrealtime s[96:97]\ns_memtime s[78:79]')
    c(f'''s_load_dwordx2 s[8:9], s[0:1], 80
    {extra_loads}
    v_lshrrev_b32 v1, 6, v0
    v_and_b32 {vlane}, 63, v0
    v_readfirstlane_b32 {sWAVE}, v1
    s_mov_b32 s10, 0x10000000
    s_mov_b32 s11, 0x20000
    s_and_b32 {sJ}, s2, 3
    s_bfe_u32 {sC}, s2, 0x10002
    s_lshr_b32 {sIDX}, s2, 3''' if not Opt.badmap else f'''s_load_dwordx2 s[8:9], s[0:1], 80
    {extra_loads}
    v_lshrrev_b32 v1, 6, v0
    v_and_b32 {vlane}, 63, v0
    v_readfirstlane_b32 {sWAVE}, v1
    s_mov_b32 s10, 0x10000000
    s_mov_b32 s11, 0x20000
    s_bfe_u32 {sJ}, s2, 0x20005
    s_bfe_u32 {sC}, s2, 0x10007
    s_and_b32 {sIDX}, s2, 31''')

NMARK = [0]
def mark(c):
    if not Opt.stamps: return
    k = NMARK[0]; NMARK[0] += 1
    assert k < 6
    c(f's_memtime s[{80 + 2 * k}:{81 + 2 * k}]')
def stamp(c, slot=0, kidx_sgpr='s77'):
    NMARK[0] = 0
    if not Opt.stamps: return
    c(f'''s_memrealtime s[98:99]
    s_memtime s[92:93]
    s_waitcnt lgkmcnt(0)
    s_lshl_b32 s94, {kidx_sgpr}, 9
    s_add_u32 s94, s94, s2
    s_lshl_b32 s94, s94, 2
    s_add_u32 s94, s94, {sWAVE}
    s_lshl_b32 s94, s94, 6
    s_add_u32 s94, s94, {STAMP}
    v_mov_b32 v250, s96
    v_mov_b32 v251, s97
    v_mov_b32 v252, s98
    v_mov_b32 v253, s99
    v_mov_b32 v254, s94
    s_mov_b64 exec, 1
    buffer_store_dwordx4 v[250:253], v254, {sWS}, 0 offen
    v_mov_b32 v250, s78
    v_mov_b32 v251, s80
    v_mov_b32 v252, s82
    v_mov_b32 v253, s84
    buffer_store_dwordx4 v[250:253], v254, {sWS}, 0 offen offset:16
    v_mov_b32 v250, s86
    v_mov_b32 v251, s88
    v_mov_b32 v252, s90
    v_mov_b32 v253, s92
    buffer_store_dwordx4 v[250:253], v254, {sWS}, 0 offen offset:32''')

def load_stats(c, V, sST, sT32, vlane):
    st = V.get(8, 4); va = V.get(); t = V.get()
    c(f'''v_and_b32 {va}, 31, {vlane}
    v_lshlrev_b32 {va}, 4, {va}
    v_lshrrev_b32 {t}, 5, {vlane}
    v_lshl_add_u32 {va}, {t}, 10, {va}
    s_lshl_b32 s3, {sT32}, 11
    s_add_u32 s3, s3, {sST}
    buffer_load_dwordx4 {st[0:4]}, {va}, {sWS}, s3 offen {Opt.sc_ld}
    buffer_load_dwordx4 {st[4:8]}, {va}, {sWS}, s3 offen offset:512 {Opt.sc_ld}''')
    V.put(t)
    def reduce(c2, bx, vvar):
        c2(f'''v_add_f32 {st[0]}, {st[0]}, {st[2]}
        v_add_f32 {st[1]}, {st[1]}, {st[3]}
        v_add_f32 {st[4]}, {st[4]}, {st[6]}
        v_add_f32 {st[5]}, {st[5]}, {st[7]}
        v_add_f32 {st[0]}, {st[0]}, {st[4]}
        v_add_f32 {st[1]}, {st[1]}, {st[5]}
        v_mov_b32 {st[2]}, {st[0]}
        v_mov_b32 {st[3]}, {st[1]}
        v_permlane32_swap_b32 {st[0]}, {st[2]}
        v_permlane32_swap_b32 {st[1]}, {st[3]}
        v_add_f32 {st[0]}, {st[0]}, {st[2]}
        v_add_f32 {st[1]}, {st[1]}, {st[3]}
        v_mul_f32 {st[0]}, {fbits(-1.0 / D)}, {st[0]}
        v_mul_f32 {st[1]}, {fbits(1.0 / D)}, {st[1]}
        v_cvt_pk_bf16_f32 {bx[0]}, {st[0]}, {st[0]}
        v_fma_f32 {st[1]}, -{st[0]}, {st[0]}, {st[1]}
        v_cvt_pk_bf16_f32 {bx[1]}, {st[0]}, {st[0]}
        v_max_f32 {st[1]}, 0, {st[1]}
        v_cvt_pk_bf16_f32 {bx[2]}, {st[0]}, {st[0]}
        v_add_f32 {vvar}, {fbits(1e-5)}, {st[1]}
        v_cvt_pk_bf16_f32 {bx[3]}, {st[0]}, {st[0]}''')
        V.put(st); V.put(va)
    return reduce

VOP3ONLY = ('v_fma_f32', 'v_cvt_pk', 'v_max3', 'v_min3', 'v_lshl_add', 'v_dot2_', 'v_bfe', 'v_pk_', 'v_add3', 'v_and_or', 'v_perm', 'v_mad', 'v_mul_lo', 'v_mul_hi', 'v_lshl_or', 'v_add_lshl')
def cost(i):
    if isinstance(i, Reset): return 0
    if isinstance(i, Group): return min(16, sum(cost(x) for x in i.items))
    if isinstance(i, Wait): return 4
    if i.kind == 'trans': return 8
    if i.kind == 'mfma': return 8
    if i.kind in ('vload', 'vstore', 'dma'): return 12
    if i.kind == 'dswrite': return 8
    if i.kind == 'valu': return 4.4 if (i.mn.startswith(VOP3ONLY) or '0x' in i.text) else 4
    return 4

def dma_ops(n0, z, bases, vW, srdW, sD, ring, off, tag):
    g, w = bases[z]; out = []
    slot = (n0 + off) % ring
    assert slot + z <= ring, (n0, z)
    for k in range(z // 4):
        cc = Code()
        if k % 4 == 0:
            cc(f's_add_u32 m0, {w}, {(slot + k) * 1024}')
            cc(f's_add_u32 {sD}, {g}, {(n0 + k) * 1024}')
        cc(f'buffer_load_dwordx4 {vW}, {srdW}, {sD} offen offset:{(k % 4) * 1024} lds', tag=tag)
        out.append(cc)
    return out

def stream_gemm(c, steps, acc, bop, xload, abuf, vLds, vW, sWbase, srdW, ring, chunks, side, sD='s40', off=0,
                pre=None, hooks=None, tail_side=True, extra=(), name='ch'):
    RA, LA, DIST, WG, BUD = Opt.RA, Opt.LA, Opt.DIST, Opt.WG, Opt.BUD
    N = len(steps); NB = len(abuf)
    assert NB >= RA + 1
    cstart = {n0: ((name, n0) if mode == 'dma' else mode) for n0, z, mode in chunks if mode != 'res'}
    vmops = []
    seen = set()
    for p, (t, ks) in enumerate(steps):
        if ks not in seen:
            seen.add(ks)
            cc = Code(); xload(cc, ks)
            if cc.items: vmops.append((p, p, cc, 0))
    for n0, z, mode in chunks:
        if mode != 'dma': continue
        ops = dma_ops(n0, z, sWbase, vW, srdW, sD, ring, off, (name, n0))
        for k, cc in enumerate(ops):
            vmops.append((n0 - RA - 4 * (len(ops) - 1 - k), n0 - RA, cc, n0 + z - ring))
    dm = [i for i, o in enumerate(vmops) if o[2].items[-1].kind == 'dma']
    for a_, b_ in reversed(list(zip(dm, dm[1:]))):
        if vmops[a_][0] > vmops[b_][0]: vmops[a_] = (vmops[b_][0],) + vmops[a_][1:]
    vmops = [o for _, o in sorted(enumerate(vmops), key=lambda e: (e[1][0], e[0]))]
    issued = 0
    freed = 0
    def try_issue(p, burst):
        nonlocal issued
        n = 0; cy = 0
        while issued < len(vmops):
            soft, hard, cc, mustfree = vmops[issued]
            force = min(o[1] for o in vmops[issued:]) <= p + 1
            if not force:
                if n >= burst: break
                if sum(1 for o in vmops[:issued] if o[1] > p) >= LA: break
                if soft - DIST > p: break
            if mustfree > freed:
                assert not force, 'ring slot not free in time'
                break
            c.add(cc); issued += 1; n += 1; cy += sum(cost(x) for x in cc.items)
        return cy
    try_issue(-RA - 1, Opt.LA0)
    if pre: c.add(pre)
    side = [(a, list(it)) for a, it in side]
    extra = list(extra)
    first = set()
    for p in range(-RA, N):
        q = p + RA
        if q in cstart:
            c.wait_vm([cstart[q]])
            c('s_barrier')
            freed = max(0, p)
        if p >= 0:
            t, ks = steps[p]
            if p % WG == 0: c.wait_lg([('a', min(N - 1, p + WG - 1))])
            cin = acc[t] if t in first else '0'
            first.add(t)
            c(f'v_mfma_f32_32x32x16_bf16 {acc[t]}, {abuf[p % NB]}, {bop(ks)}, {cin}')
        cy = (4 if (p + 1) % WG == 0 else 0) + (8 if (q + 1) in cstart else 0)
        if q < N:
            o = ((q + off) % ring) * 1024
            c(f'ds_read_b128 {abuf[q % NB]}, {vLds[o // 65536]} offset:{o % 65536}', tag=('a', q)); cy += 4
        k = try_issue(p, 2 if p < Opt.RAMP else 1); cy += k
        if not k and extra and extra[0][0] <= p:
            cc = extra.pop(0)[1]; c.add(cc); cy += sum(cost(x) for x in cc.items)
        if hooks and p in hooks: c.add(hooks[p])
        while side and p >= side[0][0]:
            it = side[0][1]
            if not it: side.pop(0); continue
            if getattr(it[0], 'tag', None) == 'needfree': assert freed >= 64
            if cy + cost(it[0]) > BUD: break
            cy += cost(it[0]); c.add(it.pop(0))
    assert issued == len(vmops)
    left = [x for a, it in side for x in it]
    if tail_side: c.add(left)
    return left, [e[1] for e in extra]

def wave_bases(c, sG, regs):
    for z, (g, w) in regs.items():
        c(f's_mul_i32 {w}, {sWAVE}, {z // 4 * 1024}')
        c(f's_add_u32 {g}, {sG}, {w}')

def kd(name, vgpr=256, agpr=256, sgpr=102):
    acc = (vgpr + 3) // 4 * 4
    return f'''.p2align 6
.amdhsa_kernel {name}
  .amdhsa_next_free_vgpr {acc + agpr}
  .amdhsa_next_free_sgpr {sgpr}
  .amdhsa_accum_offset {acc}
  .amdhsa_group_segment_fixed_size 0
  .amdhsa_kernarg_size 88
  .amdhsa_user_sgpr_count 2
  .amdhsa_user_sgpr_kernarg_segment_ptr 1
  .amdhsa_system_sgpr_workgroup_id_x 1
  .amdhsa_float_denorm_mode_32 3
.end_amdhsa_kernel
'''
def entry(name, params, body):
    s = f'.globl {name}\n.p2align 8\n.type {name},@function\n{name}:\n'
    for r, v in params.items(): s += f'  s_mov_b32 {r}, {v}\n'
    if body: s += f'  s_branch {body}\n'
    return s
```

```python
from common import *
NE, NB_, NA, ND, NC = 54, 80, 64, 70, 25
NWG = NE + NB_ + NA + ND + NC
LDS = 81920
NT = 'nt'
def srd(c, s, off, size):
    c(f's_load_dwordx2 s[{s}:{s + 1}], s[0:1], {off}\ns_mov_b32 s{s + 2}, {size}\ns_mov_b32 s{s + 3}, 0x20000')
def div(c, q, r, x, d):
    c(f's_mul_i32 {q}, {x}, {65536 // d + 1}\ns_lshr_b32 {q}, {q}, 16\ns_mul_i32 {r}, {q}, {d}\ns_sub_u32 {r}, {x}, {r}')
def hilo(c, out, p, t):
    c(f'''v_cvt_pk_bf16_f32 {t}, {p}, {p}
    v_lshlrev_b32 {t}, 16, {t}
    v_sub_f32 {t}, {p}, {t}
    v_cvt_pk_bf16_f32 {out}, {p}, {t}''')
def halves(c, x, t):
    c(f'v_mov_b32 {t}, {x}\nv_permlane32_swap_b32 {x}, {t}\nv_add_f32 {x}, {x}, {t}')

def task_e(c):
    V = Alloc('v', 1, 248)
    c('K0_E:'); srd(c, 16, 40, D * F * 2); srd(c, 20, 48, D * F * 2)
    sTK, sCC, sKR, sO, sL = 's24', 's25', 's26', 's27', 's28'
    vE = V.get(2); t = V.get(3); vL = V.get()
    c(f'''s_lshl_b32 {sTK}, s2, 2
    s_add_u32 {sTK}, {sTK}, {sWAVE}
    s_lshr_b32 {sCC}, {sTK}, 3
    s_and_b32 {sKR}, {sTK}, 7
    v_lshrrev_b32 {t[0]}, 3, v0
    v_mul_u32_u24 {t[0]}, 3456, {t[0]}
    v_bfe_u32 {t[1]}, v0, 4, 1
    v_lshlrev_b32 {t[1]}, 1, {t[1]}
    v_and_b32 {t[2]}, 7, v0
    v_xor_b32 {t[1]}, {t[1]}, {t[2]}
    v_lshl_add_u32 {vE[0]}, {t[1]}, 4, {t[0]}
    v_xor_b32 {t[1]}, 4, {t[1]}
    v_lshl_add_u32 {vE[1]}, {t[1]}, 4, {t[0]}
    s_mul_i32 {sO}, {sKR}, {80 * 3456}
    s_lshl_b32 s3, {sCC}, 7
    s_add_u32 {sO}, {sO}, s3
    s_mul_i32 {sL}, {sWAVE}, 20480
    s_waitcnt lgkmcnt(0)''')
    for n in range(10):
        for mat in range(2):
            c(f's_add_u32 m0, {sL}, {mat * 10240 + n * 1024}')
            c(f'buffer_load_dwordx4 {vE[mat]}, s[{16 + 4 * mat}:{19 + 4 * mat}], {sO} offen {NT} lds', tag=('e', n))
        c(f's_add_u32 {sO}, {sO}, {8 * 3456}')
    vR = V.get(4); cs = V.get(4)
    c(f'''v_lshlrev_b32 {vL}, 4, v0
    v_lshrrev_b32 {t[0]}, 5, v0
    v_bfe_u32 {t[1]}, v0, 2, 2
    v_lshl_add_u32 {t[0]}, {t[0]}, 3, {t[1]}
    v_lshlrev_b32 {t[0]}, 7, {t[0]}              ; row * 128
    v_bfe_u32 {t[1]}, v0, 3, 2
    v_lshl_add_u32 {t[0]}, {t[1]}, 5, {t[0]}     ; swizzle * 32
    v_bfe_u32 {t[1]}, v0, 4, 1
    v_mul_u32_u24 {t[1]}, 10240, {t[1]}
    v_add_u32 {t[0]}, {t[0]}, {t[1]}
    v_and_b32 {t[1]}, 1, v0
    v_lshl_add_u32 {t[0]}, {t[1]}, 4, {t[0]}
    v_bfe_u32 {t[1]}, v0, 1, 1
    v_lshl_add_u32 {t[0]}, {t[1]}, 3, {t[0]}
    v_add_u32 {vR[0]}, {sL}, {t[0]}''')
    for jt in range(1, 4): c(f'v_xor_b32 {vR[jt]}, {32 * jt}, {vR[0]}')
    sB = ['s30', 's31', 's32', 's33']; sS = ['s34', 's35', 's36', 's37']; sX = ['s38', 's39', 's40', 's41']
    for jt in range(4):
        c(f's_lshl_b32 s42, {sCC}, 2\ns_add_u32 s42, s42, {jt}'); div(c, 's43', 's44', 's42', 7)
        c(f'''s_mul_i32 s43, s43, {W3G}
        s_add_u32 s43, s43, {W3F}
        s_mul_i32 s45, s44, 41
        s_cmp_lt_u32 s44, {P3_NA}
        s_cselect_b32 s45, s44, s45
        s_cselect_b32 {sS[jt]}, {P3_NA}, 1
        s_lshl_b32 {sS[jt]}, {sS[jt]}, 10
        s_lshl_b32 s45, s45, 10
        s_add_u32 s43, s43, s45
        s_mul_i32 s45, {sKR}, 5
        s_mul_i32 s45, s45, {sS[jt]}
        s_add_u32 {sB[jt]}, s43, s45
        s_mul_i32 s45, {sS[jt]}, 40
        s_add_u32 {sX[jt]}, s43, s45
        v_mov_b32 {cs[jt]}, 0''')
    c('s_mov_b32 s46, 0x3f803f80')
    fr = [V.get(4, 4) for _ in range(8)]
    for ksl in range(5):
        c.wait_vm([('e', 2 * ksl + 1)])
        for jt in range(4):
            f = fr[(ksl * 4 + jt) % 8]
            for rd in range(2): c(f'ds_read_b64_tr_b16 {f[2 * rd:2 * rd + 2]}, {vR[jt]} offset:{ksl * 2048 + rd * 512}')
        for jt in range(4):
            f = fr[(ksl * 4 + jt) % 8]
            c(f'buffer_store_dwordx4 {f}, {vL}, {sWS}, {sB[jt]} offen\ns_add_u32 {sB[jt]}, {sB[jt]}, {sS[jt]}')
        for k in range(4):
            for jt in range(4): c(f'v_dot2_f32_bf16 {cs[jt]}, {fr[(ksl * 4 + jt) % 8][k]}, s46, {cs[jt]}')
    c(f'''s_lshr_b32 s3, {sKR}, 2
    s_lshl_b32 s3, s3, 9
    s_and_b32 s42, {sKR}, 3
    s_lshl_b32 s42, s42, 2
    s_add_u32 s42, s42, s3''')
    for jt in range(4): halves(c, cs[jt], t[0])
    for jt in range(4): hilo(c, cs[jt], cs[jt], t[0]); c(f's_add_u32 {sX[jt]}, {sX[jt]}, s42')
    c('s_mov_b32 exec_hi, 0')
    for jt in range(4): c(f'buffer_store_dword {cs[jt]}, {vL}, {sWS}, {sX[jt]} offen')
    c('s_branch K0_DONE')

def task_dc(c, name, wg0, ntask, karg, size, WF, WG_):
    V = Alloc('v', 1, 248)
    c(f'K0_{name}:'); srd(c, 16, karg, size)
    sTK, sKS, sCC, sO, sL = 's24', 's25', 's26', 's27', 's28'
    vD = V.get(2); t = V.get(3); vL = V.get()
    c(f'''s_sub_u32 {sTK}, s2, {wg0}
    s_lshl_b32 {sTK}, {sTK}, 2
    s_add_u32 {sTK}, {sTK}, {sWAVE}
    s_cmp_ge_u32 {sTK}, {ntask}
    s_cbranch_scc1 K0_END''')
    div(c, sKS, sCC, sTK, 5)
    c(f'''v_lshrrev_b32 {t[0]}, 4, v0
    v_lshlrev_b32 {t[1]}, 1, {t[0]}
    v_and_b32 {t[2]}, 15, v0
    v_xor_b32 {t[1]}, {t[1]}, {t[2]}
    v_mul_u32_u24 {t[0]}, 1280, {t[0]}
    v_lshl_add_u32 {vD[0]}, {t[1]}, 4, {t[0]}
    v_xor_b32 {vD[1]}, 128, {vD[0]}
    s_lshl_b32 {sL}, {sWAVE}, 13
    s_lshl_b32 s3, {sCC}, 8''')
    if name == 'D':
        c(f's_mov_b32 {sO}, s3'); div(c, 's29', 's30', sKS, 14)
        for hf in range(2):
            c(f's_lshl_b32 s31, s30, 1\ns_add_u32 s31, s31, {hf}')
            div(c, 's47', 's48', 's31', NEARLY)
            c(f'''s_mul_i32 s47, s47, 7
            s_add_u32 s47, s47, s48
            s_sub_u32 s48, s30, {2 * NEARLY}
            s_mul_i32 s48, s48, 7
            s_add_u32 s48, s48, {NEARLY + hf}
            s_cmp_lt_u32 s30, {2 * NEARLY}
            s_cselect_b32 s47, s47, s48
            s_mul_i32 s48, s29, 28
            s_add_u32 s47, s47, s48
            s_mul_i32 s{50 + hf}, s47, {16 * 1280}
            s_cmp_lt_u32 s47, 108
            s_cselect_b32 s{50 + hf}, s{50 + hf}, {OOB}''')
    else:
        div(c, 's29', 's30', sKS, 5)
        c(f'''s_mul_i32 {sO}, s29, {160 * 1280}
        s_add_u32 {sO}, {sO}, s3
        s_mul_i32 s31, s30, {40 * 1280}
        s_cmp_lt_u32 s30, 4
        s_cselect_b32 s31, s31, 0
        s_add_u32 {sO}, {sO}, s31
        s_cmp_lt_u32 s30, 4''')
    c('s_waitcnt lgkmcnt(0)')
    for n in range(8):
        kq = n >> 1
        if name == 'D': c(f's_add_u32 s31, s{50 + (n >> 2)}, {4 * (n & 3) * 1280}')
        else:
            c(f's_mov_b32 s31, {(40 * kq + 20 * (n & 1) + 16) * 1280}')
            c(f's_cselect_b32 s31, {(20 * (kq >> 1) + 8 * (kq & 1) + 4 * (n & 1)) * 1280}, s31')
        c(f'''v_add_u32 {t[0]}, s31, {vD[(n >> 1) & 1]}
        s_mov_b32 m0, {sL}
        buffer_load_dwordx4 {t[0]}, s[16:19], {sO} offen {NT} lds
        s_or_b32 {sL}, {sL}, {sL}''' if False else f'''v_add_u32 {t[n % 3]}, s31, {vD[(n >> 1) & 1]}
        s_lshl_b32 m0, {sWAVE}, 13''')
        c(f's_or_b32 m0, m0, {n * 1024}' if n else 's_nop 0')
        if name == 'C': c('s_cmp_lt_u32 s30, 4')
        c(f'buffer_load_dwordx4 {t[n % 3]}, s[16:19], {sO} offen {NT} lds', tag='d')
    vR = V.get(8)
    c(f'''v_lshlrev_b32 {vL}, 4, v0
    v_lshrrev_b32 {t[0]}, 4, v0
    v_bfe_u32 {t[1]}, v0, 2, 2
    v_lshl_add_u32 {t[0]}, {t[0]}, 3, {t[1]}
    v_lshlrev_b32 {t[0]}, 8, {t[0]}
    v_bfe_u32 {t[1]}, v0, 2, 3
    v_lshl_add_u32 {t[0]}, {t[1]}, 5, {t[0]}
    v_and_b32 {t[1]}, 1, v0
    v_lshl_add_u32 {t[0]}, {t[1]}, 4, {t[0]}
    v_bfe_u32 {t[1]}, v0, 1, 1
    v_lshl_add_u32 {t[0]}, {t[1]}, 3, {t[0]}
    v_add_u32 {vR[0]}, {sL}, {t[0]}''')
    for jt in range(1, 8): c(f'v_xor_b32 {vR[jt]}, {32 * jt}, {vR[0]}')
    sB = [f's{32 + j}' for j in range(8)]
    for jt in range(8):
        c(f's_lshl_b32 s42, {sCC}, 3\ns_add_u32 s42, s42, {jt}'); div(c, 's43', 's44', 's42', 5)
        c(f'''s_mul_i32 s43, s43, {WG_}
        s_mul_i32 s45, {sKS}, 5
        s_add_u32 s45, s45, s44
        s_lshl_b32 s45, s45, 10
        s_add_u32 s43, s43, s45
        s_add_u32 {sB[jt]}, s43, {WF}''')
    fr = [V.get(4, 4) for _ in range(8)]
    c.wait_vm('d')
    for jt in range(8):
        for rd in range(2): c(f'ds_read_b64_tr_b16 {fr[jt][2 * rd:2 * rd + 2]}, {vR[jt]} offset:{rd * 1024}')
    for jt in range(8): c(f'buffer_store_dwordx4 {fr[jt]}, {vL}, {sWS}, {sB[jt]} offen')
    c('s_branch K0_DONE')

def task_a(c, wg0):
    V = Alloc('v', 1, 248)
    c('K0_A:'); srd(c, 16, 0, S * D * 2)
    sTK = 's24'; t = V.get(2); vI = V.get(); vS = V.get(); vL = V.get()
    xr = [V.get(4, 4) for _ in range(10)]; st = V.get(4, 4); ff = V.get(4, 4)
    c(f'''s_sub_u32 {sTK}, s2, {wg0}
    s_lshl_b32 {sTK}, {sTK}, 2
    s_add_u32 {sTK}, {sTK}, {sWAVE}
    v_lshrrev_b32 {t[0]}, 3, v0
    v_and_b32 {t[1]}, 7, v0
    v_mul_u32_u24 {vI}, 1280, {t[0]}
    v_lshl_add_u32 {vI}, {t[1]}, 4, {vI}
    v_lshlrev_b32 {vS}, 9, {t[1]}
    v_lshl_add_u32 {vS}, {t[0]}, 4, {vS}
    s_mul_i32 s25, {sTK}, {8 * 1280}
    s_waitcnt lgkmcnt(0)''')
    for i in range(10): c(f'buffer_load_dwordx4 {xr[i]}, {vI}, s[16:19], s25 offen offset:{i * 128} {NT}')
    c(f'''v_lshlrev_b32 {vL}, 4, v0
    s_lshl_b32 s26, {sTK}, 12
    s_add_u32 s26, s26, {KVP[0]}''')
    for k in range(4): c(f'v_mov_b32 {ff[k]}, -1\nv_mov_b32 {st[k]}, 0')
    for k in range(8):
        if k == 4: c(f's_add_u32 s26, s26, {LSTR}')
        c(f'buffer_store_dwordx4 {ff}, {vL}, {sWS}, s26 offen offset:{(k % 4) * 1024}')
    c(f'''v_lshlrev_b32 {vL}, 7, v0
    s_lshr_b32 s27, {sTK}, 7
    s_mul_i32 s26, s27, {LSTR}
    s_and_b32 s27, {sTK}, 127
    s_lshl_b32 s3, s27, 13
    s_add_u32 s26, s26, s3
    s_add_u32 s26, s26, {FL0}
    s_cmp_lt_u32 s27, 80
    s_cselect_b32 s26, s26, {TICK}
    s_cselect_b64 exec, -1, 0xff
    buffer_store_dword {st[0]}, {vL}, {sWS}, s26 offen
    s_mov_b64 exec, -1''')
    c(f'''s_lshr_b32 s27, {sTK}, 2
    s_and_b32 s3, {sTK}, 3
    s_lshl_b32 s3, s3, 7
    s_mul_i32 s28, s27, 40960
    s_add_u32 s28, s28, s3
    s_add_u32 s28, s28, {X[0]}
    s_lshl_b32 s29, s27, 11
    s_add_u32 s29, s29, s3
    s_add_u32 s29, s29, {ST[0]}
    s_mov_b32 s46, 0x3f803f80''')
    for i in range(10):
        c(f'buffer_store_dwordx4 {xr[i]}, {vS}, {sWS}, s28 offen\ns_addk_i32 s28, 4096')
        for k in range(4): c(f'v_dot2_f32_bf16 {st[0]}, {xr[i][k]}, s46, {st[0]}\nv_dot2_f32_bf16 {st[1]}, {xr[i][k]}, {xr[i][k]}, {st[1]}')
    for dp in ('quad_perm:[1,0,3,2]', 'quad_perm:[2,3,0,1]', 'row_half_mirror'):
        for k in range(2): c(f'v_add_f32_dpp {st[k]}, {st[k]}, {st[k]} {dp} row_mask:0xf bank_mask:0xf')
    c(f'''v_cmp_eq_u32 vcc, 0, {t[1]}
    v_cndmask_b32 {st[0]}, 0, {st[0]}, vcc
    v_cndmask_b32 {st[1]}, 0, {st[1]}, vcc
    s_mov_b32 exec_lo, 0x0f0f0f0f
    s_mov_b32 exec_hi, 0x0f0f0f0f
    buffer_store_dwordx4 {st}, {vS}, {sWS}, s29 offen
    s_branch K0_DONE''')

def task_b(c, wg0):
    V = Alloc('v', 1, 248)
    PH, IDM, CSX = 0, 4224, 8448
    c('K0_B:'); srd(c, 16, 8, D * 3 * D * 2); srd(c, 20, 16, H * DH * DH * 2)
    sG, sKR, sKB = 's24', 's25', 's26'
    t = V.get(4); vA = V.get(); vT = V.get(); vL = V.get(); ph = V.get(2, 2); z = V.get(4, 4)
    c(f's_sub_u32 s3, s2, {wg0}'); div(c, sG, sKR, 's3', 5)
    c(f'''s_lshl_b32 {sKB}, {sKR}, 2
    s_add_u32 {sKB}, {sKB}, {sWAVE}
    v_and_b32 {t[0]}, 0x13, v0
    v_bfe_u32 {t[1]}, v0, 2, 1
    v_lshl_add_u32 {t[0]}, {t[1]}, 3, {t[0]}
    v_bfe_u32 {t[1]}, v0, 3, 1
    v_lshl_add_u32 {t[0]}, {t[1]}, 2, {t[0]}
    v_mul_u32_u24 {t[0]}, 3840, {t[0]}
    v_lshrrev_b32 {t[1]}, 5, v0
    v_lshl_add_u32 {vA}, {t[1]}, 4, {t[0]}
    s_lshl_b32 s3, {sWAVE}, 6
    v_add_u32 {vT}, s3, v0
    v_lshlrev_b32 {t[0]}, 3, {vT}
    s_mul_i32 s27, {sG}, 1600
    s_mul_i32 s28, {sKB}, {32 * 3840}
    s_mul_i32 s3, {sG}, 80
    s_add_u32 s28, s28, s3
    s_waitcnt lgkmcnt(0)
    buffer_load_dwordx2 {ph}, {t[0]}, s[20:23], s27 offen''')
    af = [[V.get(4, 4) for j in range(3)] for sec in range(3)]
    for sec, cb in enumerate((640, 1280, 0)):
        for j in range(3): c(f'buffer_load_dwordx4 {af[sec][j]}, {vA}, s[16:19], s28 offen offset:{cb * 2 + 32 * j}')
    for k in range(4): c(f'v_mov_b32 {z[k]}, 0')
    c(f'v_lshlrev_b32 {vL}, 4, v0\nv_lshlrev_b32 {t[0]}, 4, {vT}')
    for k in range(3): c(f'ds_write_b128 {t[0]}, {z} offset:{4096 * k}', tag='z')
    c(f'''v_cmp_le_u32 vcc, 100, {vT}
    v_cndmask_b32 {t[0]}, 0, 1, vcc
    v_mul_u32_u24 {t[1]}, 100, {t[0]}
    v_sub_u32 {t[1]}, {vT}, {t[1]}
    v_mul_u32_u24 {t[2]}, 52429, {t[1]}
    v_lshrrev_b32 {t[2]}, 18, {t[2]}
    v_mul_u32_u24 {t[3]}, 5, {t[2]}
    v_sub_u32 {t[1]}, {t[1]}, {t[3]}
    v_mul_u32_u24 {t[2]}, 88, {t[2]}
    v_lshl_add_u32 {t[2]}, {t[1]}, 3, {t[2]}
    v_mul_u32_u24 {t[0]}, {20 * 88 + 40}, {t[0]}
    v_add_u32 {t[2]}, {t[2]}, {t[0]}
    v_mul_u32_u24 {t[3]}, 90, {vT}
    v_mov_b32 {t[1]}, 0x3f80''')
    c.wait_lg('z'); c('s_barrier')
    c(f'''v_cmp_gt_u32 vcc, 200, {vT}
    s_and_saveexec_b64 s[30:31], vcc''')
    c(f'ds_write_b64 {t[2]}, {ph} offset:{PH}', tag='w')
    c(f'''s_mov_b64 exec, s[30:31]
    v_cmp_gt_u32 vcc, 40, {vT}
    s_and_saveexec_b64 s[30:31], vcc''')
    c(f'ds_write_b16 {t[3]}, {t[1]} offset:{IDM}', tag='w')
    c('s_mov_b64 exec, s[30:31]')
    combos = [(0, 0), (1, 0), (1, 1), (2, 1), (2, 2), (3, 2)]
    vB = V.get(6); u = V.get(2)
    c(f'''v_lshrrev_b32 {t[0]}, 5, v0
    v_bfe_u32 {t[1]}, v0, 2, 2
    v_lshl_add_u32 {t[0]}, {t[0]}, 3, {t[1]}
    v_mul_u32_u24 {t[0]}, 88, {t[0]}            ; row * 88
    v_bfe_u32 {t[1]}, v0, 4, 1
    v_bfe_u32 {t[2]}, v0, 1, 1
    v_lshl_add_u32 {t[1]}, {t[1]}, 1, {t[2]}
    v_lshlrev_b32 {u[0]}, 2, {t[1]}             ; 4 (quad >> 1)
    v_and_b32 {t[1]}, 1, v0
    v_mul_u32_u24 {u[1]}, 40, {t[1]}
    v_mov_b32 {t[3]}, 80''')
    for n, (tt, sec) in enumerate(combos):
        c(f'''v_add_u32 {t[1]}, {16 * tt - 20 * sec}, {u[0]}
        v_cmp_gt_u32 vcc, 20, {t[1]}
        v_lshl_add_u32 {t[1]}, {t[1]}, 1, {u[1]}
        v_cndmask_b32 {t[1]}, {t[3]}, {t[1]}, vcc
        v_add_u32 {vB[n]}, {t[0]}, {t[1]}''')
    c.wait_lg('w'); c('s_barrier')
    bf_ = [[V.get(4, 4) for j in range(3)] for n in range(6)]
    Dt = [V.get(16, 4) for _ in range(4)]
    for n, (tt, sec) in enumerate(combos):
        for j in range(3):
            for rd in range(2):
                c(f'ds_read_b64_tr_b16 {bf_[n][j][2 * rd:2 * rd + 2]}, {vB[n]} offset:{(IDM if sec == 1 else PH) + (16 * j + 4 * rd) * 88}')
    seen = set()
    for n, (tt, sec) in enumerate(combos):
        for j in range(3):
            c(f'v_mfma_f32_32x32x16_bf16 {Dt[tt]}, {af[sec][j]}, {bf_[n][j]}, {Dt[tt] if tt in seen else 0}'); seen.add(tt)
    cs = V.get(4); c('s_mov_b32 s46, 0x3f803f80')
    c(f'''s_mul_i32 s27, {sG}, {W1G}
    s_add_u32 s27, s27, {W1F}''')
    for tt in range(4):
        o = [bf_[tt][0], bf_[tt][1]]
        stride = P1_NA if tt < P1_NA else 1; base = tt if tt < P1_NA else 41 * tt
        c(f's_mul_i32 s3, {sKB}, {2 * stride * 1024}\ns_add_u32 s3, s3, s27\ns_add_u32 s3, s3, {base * 1024}\nv_mov_b32 {cs[tt]}, 0')
        for hf in range(2):
            for k in range(4): c(f'v_cvt_pk_bf16_f32 {o[hf][k]}, {Dt[tt][8 * hf + 2 * k]}, {Dt[tt][8 * hf + 2 * k + 1]}')
            c(f'buffer_store_dwordx4 {o[hf]}, {vL}, {sWS}, s3 offen offset:{hf * stride * 1024}')
        for hf in range(2):
            for k in range(4): c(f'v_dot2_f32_bf16 {cs[tt]}, {o[hf][k]}, s46, {cs[tt]}')
    c(f'''v_and_b32 {t[0]}, 31, v0
    v_lshlrev_b32 {t[0]}, 2, {t[0]}
    s_lshl_b32 s3, {sWAVE}, 9
    v_add_u32 {t[1]}, s3, {t[0]}
    s_lshl_b32 s3, {sWAVE}, 7
    v_add_u32 {t[2]}, s3, {t[0]}''')
    for tt in range(4): halves(c, cs[tt], t[3]); c(f'ds_write_b32 {t[1]}, {cs[tt]} offset:{CSX + 128 * tt}', tag='cs')
    c.wait_lg('cs'); c('s_barrier')
    for w in range(4): c(f'ds_read_b32 {cs[w]}, {t[2]} offset:{CSX + 512 * w}')
    c(f'''v_add_f32 {cs[0]}, {cs[0]}, {cs[1]}
    v_add_f32 {cs[2]}, {cs[2]}, {cs[3]}
    v_add_f32 {cs[0]}, {cs[0]}, {cs[2]}''')
    hilo(c, z[0], cs[0], t[0])
    c(f'''s_mul_i32 s3, {sWAVE}, 41
    s_add_u32 s3, s3, 40
    s_add_u32 s28, {sWAVE}, {40 * P1_NA}
    s_cmp_lt_u32 {sWAVE}, {P1_NA}
    s_cselect_b32 s3, s28, s3
    s_lshl_b32 s3, s3, 10
    s_add_u32 s27, s27, s3
    s_mov_b32 exec_hi, 0
    s_cmp_eq_u32 {sKR}, 4
    s_cbranch_scc1 K0_B4
    s_lshl_b32 s3, {sKR}, 2
    s_add_u32 s27, s27, s3
    buffer_store_dword {z[0]}, {vL}, {sWS}, s27 offen
    s_branch K0_DONE
    K0_B4:
    buffer_store_dwordx4 {z}, {vL}, {sWS}, s27 offen offset:512
    s_branch K0_DONE''')

def k0_body():
    c = Code()
    c('K0_BODY:')
    prologue(c, NWG, 'K0_END')
    b0 = NE; a0 = b0 + NB_; d0 = a0 + NA; c0 = d0 + ND
    c(f'''s_cmp_lt_u32 s2, {b0}
    s_cbranch_scc1 K0_E
    s_cmp_lt_u32 s2, {a0}
    s_cbranch_scc1 K0_B
    s_cmp_lt_u32 s2, {d0}
    s_cbranch_scc1 K0_A
    s_cmp_lt_u32 s2, {c0}
    s_cbranch_scc1 K0_D''')
    for fn in (lambda: task_dc(c, 'C', c0, 100, 24, D * D * 2, WOF, WOG), lambda: task_dc(c, 'D', d0, 280, 56, F * D * 2, WDF, WDG),
               lambda: task_a(c, a0), lambda: task_b(c, b0), lambda: task_e(c)):
        fn(); c.add(Reset())
    c('K0_DONE:')
    if Opt.stamps: c('s_waitcnt vmcnt(0)\ns_mov_b64 exec, -1')
    stamp(c)
    c('K0_END:\ns_endpgm')
    return c
```

```python
from common import *
from p1 import softmax_k, softmax_q
sOUT, sLS, sW3, sW1 = 's[4:7]', 's[16:19]', 's[20:23]', 's[72:75]'
sLAY = 's24'
B1 = {4: ('s28', 's25'), 28: ('s29', 's26'), 32: ('s30', 's27')}
B3 = {4: ('s31', 's25'), 28: ('s32', 's26'), 32: ('s33', 's27')}
sD, sXo, sXb, sSTb, sKVs, sKVl, sO1, sO2, sF32, sF16, sPx, sPo = (f's{i}' for i in range(34, 46))
sBo = ['s46', 's47', 's48', 's49']; sBh = ['s50', 's51', 's52', 's53']
sB, sAo, sAd, sA, sXs, sSTs, sHE, sHL, sOf, sCnt = (f's{i}' for i in range(54, 64))
vL, vPx, vPo, vXa, vS, vSt, vH = (Rg('v', i, 1) for i in (1, 4, 5, 6, 7, 8, 9))
vLds = [vL, Rg('v', 2, 1), Rg('v', 3, 1)]
res = Rg('v', 10, 10); vOne = Rg('v', 20, 1); vPoll = Rg('v', 21, 1)
V0 = 24
xf = [Rg('a', 4 * k, 4) for k in range(40)]
abuf = [Rg('a', 160 + 4 * k, 4) for k in range(8)]
woF = [Rg('a', 192 + 4 * k, 4) for k in range(16)] + [Rg('a', 4 * k, 4) for k in range(9)]
TT = [Rg('a', 36 + 4 * k, 4) for k in range(16)]
bb2 = [Rg('a', 100 + 4 * k, 4) for k in range(20)]
wdF = [Rg('v', 160 + 4 * k, 4) for k in range(24)] + [Rg('a', 192 + 4 * k, 4) for k in range(16)] + [Rg('a', 4 * k, 4) for k in range(30)]
bb4 = [Rg('a', 120 + 4 * k, 4) for k in range(18)]
IMG, CMP, RED2, RED4, OFF3 = 4096, 40960, 4096, 100 * 1024, 64
PART1 = [(0, 32), (32, 32), (64, 32), (96, 4)]; PART2 = [(100, 32), (132, 28)]
slow = Code()
SC = 'sc1'

def mk(c):
    if Opt.stamps:
        c('''s_memrealtime s[96:97]
        s_memtime s[98:99]
        s_waitcnt lgkmcnt(0)
        v_writelane_b32 v22, s96, s95
        v_writelane_b32 v23, s98, s95
        s_add_u32 s95, s95, 1''')
def part(which, W):
    bases, srd, off = (B1, sW1, 0) if W == 1 else (B3, sW3, OFF3)
    return [cc for n0, z in which for cc in dma_ops(n0, z, bases, vL, srd, sD, 160, off, f'w{W}p{1 if which is PART1 else 2}')]
def publish(c, tags, soff, base):
    c.wait_vm(tags)
    c(f'''s_add_u32 s3, {soff}, {base}
    s_mov_b64 exec, 1
    buffer_store_dword {vOne}, {vL}, {sLS}, s3 offen sc1
    s_mov_b64 exec, -1''')
def poll_issue(c, va, soff, base, mask):
    c(f'''s_add_u32 s70, {soff}, {base}
    s_mov_b64 exec, {mask}
    buffer_load_dword {vPoll}, {va}, {sLS}, s70 offen sc1
    s_mov_b64 exec, -1''')
def poll_check(c, va, mask, name):
    c(f'''v_cmp_ne_u32 vcc, 1, {vPoll}
    s_and_b64 vcc, vcc, {mask}
    s_cbranch_vccnz {name}_SPIN
    {name}_OK:''')
    slow(f'''{name}_SPIN:
    s_mov_b32 {sCnt}, 0x4000
    s_mov_b64 exec, {mask}
    {name}_AGAIN:
    s_sleep {Opt.PSLEEP}
    buffer_load_dword {vPoll}, {va}, {sLS}, s70 offen sc1
    s_waitcnt vmcnt(0)
    v_cmp_ne_u32 vcc, 1, {vPoll}
    s_sub_u32 {sCnt}, {sCnt}, 1
    s_cselect_b64 s[64:65], 0, -1
    s_and_b64 vcc, vcc, s[64:65]
    s_cbranch_vccnz {name}_AGAIN
    s_mov_b64 exec, -1
    s_branch {name}_OK''')
    slow.add(Reset())
class Soff:
    def __init__(self, s): self.s = s; self.cur = None
    def at(self, cc, base, n):
        if n < 4: return f'{base} offen offset:{n * 1024}'
        if self.cur != (base, n // 4):
            cc(f's_add_u32 {self.s}, {base}, {n // 4 * 4096}'); self.cur = (base, n // 4)
        return f'{self.s} offen offset:{n % 4 * 1024}'
def wloads(regs, base, n0, n1):
    so = Soff(sA); out = []
    for n in range(n0, n1):
        cc = Code(); o = so.at(cc, base, n); cc(f'buffer_load_dwordx4 {regs[n]}, {vL}, {sWS}, {o}'); out.append(cc)
    return out

def stats(c, V, base):
    st = V.get(8, 4)
    c(f'''s_add_u32 s3, {sSTb}, {base}
    buffer_load_dwordx4 {st[0:4]}, {vSt}, {sLS}, s3 offen {SC}
    buffer_load_dwordx4 {st[4:8]}, {vSt}, {sLS}, s3 offen offset:512 {SC}''')
    def reduce(c2, bx, vvar):
        c2(f'''v_add_f32 {st[0]}, {st[0]}, {st[2]}
        v_add_f32 {st[1]}, {st[1]}, {st[3]}
        v_add_f32 {st[4]}, {st[4]}, {st[6]}
        v_add_f32 {st[5]}, {st[5]}, {st[7]}
        v_add_f32 {st[0]}, {st[0]}, {st[4]}
        v_add_f32 {st[1]}, {st[1]}, {st[5]}
        v_mov_b32 {st[2]}, {st[0]}
        v_mov_b32 {st[3]}, {st[1]}
        v_permlane32_swap_b32 {st[0]}, {st[2]}
        v_permlane32_swap_b32 {st[1]}, {st[3]}
        v_add_f32 {st[0]}, {st[0]}, {st[2]}
        v_add_f32 {st[1]}, {st[1]}, {st[3]}
        v_mul_f32 {st[0]}, {fbits(-1.0 / D)}, {st[0]}
        v_mul_f32 {st[1]}, {fbits(1.0 / D)}, {st[1]}
        v_cvt_pk_bf16_f32 {bx[0]}, {st[0]}, {st[0]}
        v_fma_f32 {st[1]}, -{st[0]}, {st[0]}, {st[1]}
        v_cvt_pk_bf16_f32 {bx[1]}, {st[0]}, {st[0]}
        v_max_f32 {st[1]}, 0, {st[1]}
        v_cvt_pk_bf16_f32 {bx[2]}, {st[0]}, {st[0]}
        v_add_f32 {vvar}, {fbits(1e-5)}, {st[1]}
        v_cvt_pk_bf16_f32 {bx[3]}, {st[0]}, {st[0]}''')
        V.put(st)
    return reduce
def xloader(base):
    so = Soff(sXo)
    def xload(cc, ks):
        if ks == 40: return
        if ks == 0: cc(f's_add_u32 s71, {sXb}, {base}')
        o = so.at(cc, 's71', ks); cc(f'buffer_load_dwordx4 {xf[ks]}, {vL}, {sLS}, {o} {SC}')
    return xload

def prolog(c):
    c(f'''s_cmp_ge_u32 s2, 256
    s_cbranch_scc1 M_END
    s_load_dwordx2 s[8:9], s[0:1], 80
    s_load_dwordx2 s[4:5], s[0:1], 64
    v_lshrrev_b32 v1, 6, v0
    v_and_b32 v0, 63, v0
    v_readfirstlane_b32 {sWAVE}, v1
    s_mov_b32 s10, 0x10000000
    s_mov_b32 s11, 0x20000
    v_lshlrev_b32 {vL}, 4, v0
    v_mov_b32 {vOne}, 1
    s_mov_b32 s95, 0''')
    mk(c)
    c(f'''s_cmp_lg_u32 {sWAVE}, 0
    s_cbranch_scc1 M_TICKED
    s_getreg_b32 s13, hwreg(HW_REG_XCC_ID, 0, 4)
    s_mov_b32 s14, 8
    s_waitcnt lgkmcnt(0)
    s_mov_b64 exec, 1
    M_TICK:
    s_and_b32 s13, s13, 7
    s_lshl_b32 s3, s13, 7
    s_add_u32 s3, s3, {TICK}
    v_mov_b32 {vPoll}, 1
    buffer_atomic_add {vPoll}, {vL}, {sWS}, s3 offen sc0 sc1
    s_waitcnt vmcnt(0)
    v_readfirstlane_b32 s15, {vPoll}
    s_cmp_lt_u32 s15, 32
    s_cbranch_scc1 M_GOT
    s_add_u32 s13, s13, 1
    s_sub_u32 s14, s14, 1
    s_cmp_lg_u32 s14, 0
    s_cbranch_scc1 M_TICK
    s_mov_b32 s13, 8
    M_GOT:
    s_lshl_b32 s13, s13, 5
    s_and_b32 s15, s15, 31
    s_or_b32 s13, s13, s15
    v_mov_b32 {vPoll}, s13
    ds_write_b32 {vL}, {vPoll}
    s_mov_b64 exec, -1
    s_waitcnt lgkmcnt(0)
    M_TICKED:''')
    c.add(Reset())
    t = Rg('v', 24, 4)
    c(f'''s_mov_b32 s6, {S * D * 2}
    s_mov_b32 s7, 0x20000
    s_mov_b32 s18, 0x10000000
    s_mov_b32 s19, 0x20000
    s_mov_b32 s22, {W3F + 15 * W3G + 123 * 1024}
    s_mov_b32 s23, 0x20000
    s_mov_b32 s74, 0x10000000
    s_mov_b32 s75, 0x20000
    s_mov_b32 {sLAY}, 0
    v_add_u32 v2, 0x10000, {vL}
    v_add_u32 v3, 0x20000, {vL}
    v_and_b32 {t[0]}, 15, v0
    v_lshlrev_b32 {vPx}, 7, {t[0]}
    v_bfe_u32 {t[1]}, v0, 1, 2
    v_lshlrev_b32 {t[1]}, 7, {t[1]}
    v_and_b32 {t[2]}, 1, v0
    v_lshl_add_u32 {vPo}, {t[2]}, 11, {t[1]}
    v_lshlrev_b32 {t[0]}, 4, {t[0]}              ; (lane & 15) * 16
    v_bfe_u32 {t[1]}, v0, 4, 1
    v_lshrrev_b32 {t[2]}, 5, v0
    v_lshl_add_u32 {t[3]}, {t[1]}, 9, {t[0]}
    v_lshl_add_u32 {vXa}, {t[2]}, 3, {t[3]}
    v_lshl_add_u32 {vS}, {t[2]}, 10, {t[3]}
    v_mul_u32_u24 {t[1]}, {NKH * 1024}, {t[1]}
    v_add_u32 {t[1]}, {t[1]}, {t[0]}
    v_lshl_add_u32 {vH}, {t[2]}, 8, {t[1]}
    v_and_b32 {t[0]}, 31, v0
    v_lshlrev_b32 {t[0]}, 4, {t[0]}
    v_lshl_add_u32 {vSt}, {t[2]}, 10, {t[0]}
    v_mov_b32 {t[0]}, 0
    s_waitcnt lgkmcnt(0)
    s_mov_b32 s16, s8
    s_mov_b32 s17, s9
    s_mov_b32 s20, s8
    s_mov_b32 s21, s9
    s_mov_b32 s72, s8
    s_mov_b32 s73, s9
    s_barrier
    ds_read_b32 {t[1]}, {t[0]}
    s_waitcnt lgkmcnt(0)
    v_readfirstlane_b32 s13, {t[1]}
    s_barrier
    s_cmp_ge_u32 s13, 256
    s_cbranch_scc1 M_END''')
    sRB, sM, sT32, sT64, sCG = 's66', 's67', 's68', 's69', 's76'
    c(f'''s_bfe_u32 {sRB}, s13, 0x20005
    s_lshl_b32 {sRB}, {sRB}, 2
    s_and_b32 s3, s13, 3
    s_add_u32 {sRB}, {sRB}, s3
    s_lshr_b32 {sM}, s13, 7
    s_lshl_b32 {sM}, {sM}, 3
    s_bfe_u32 s3, s13, 0x30002
    s_add_u32 {sM}, {sM}, s3
    s_mul_i32 s14, {sM}, {W1G}
    s_add_u32 s14, s14, {W1F}''')
    wave_bases(c, 's14', B1)
    for cc in part(PART1, 1): c.add(cc)
    mk(c)
    c(f's_mul_i32 s14, {sM}, {W3G}\ns_add_u32 s14, s14, {W3F}')
    for z, (g, w) in B3.items(): c(f's_add_u32 {g}, s14, {w}')
    c(f'''s_lshl_b32 {sT32}, {sRB}, 2
    s_add_u32 {sT32}, {sT32}, {sWAVE}
    s_and_b32 s3, {sM}, 1
    s_lshl_b32 {sT64}, {sRB}, 1
    s_add_u32 {sT64}, {sT64}, s3
    s_lshr_b32 {sCG}, {sM}, 1
    s_mul_i32 {sXb}, {sT32}, 40960
    s_lshl_b32 {sSTb}, {sT32}, 11
    s_lshl_b32 {sKVl}, {sM}, 16
    s_add_u32 {sKVl}, {sKVl}, {KV}
    s_lshl_b32 s3, {sRB}, 12
    s_add_u32 {sKVs}, {sKVl}, s3
    s_lshr_b32 s14, {sM}, 2
    s_and_b32 s15, {sM}, 3
    s_mul_i32 s3, s14, 5120
    s_add_u32 {sO1}, {sXb}, s3
    s_add_u32 {sO1}, {sO1}, {OO}
    s_lshl_b32 s3, s15, 8
    s_add_u32 {sO2}, {sO1}, s3
    s_add_u32 {sO2}, {sO2}, 4096
    s_lshl_b32 s3, s15, 10
    s_add_u32 {sO1}, {sO1}, s3
    s_mul_i32 {sHE}, {sT32}, {2 * NKH * 1024}
    s_mul_i32 s3, s14, {28 * 512}
    s_add_u32 {sHE}, {sHE}, s3
    s_add_u32 {sHE}, {sHE}, {HH}
    s_mul_i32 s3, s15, {(7 - NEARLY) * 512}
    s_add_u32 {sHL}, {sHE}, s3
    s_add_u32 {sHL}, {sHL}, {4 * NEARLY * 512}
    s_mul_i32 s3, s15, {NEARLY * 512}
    s_add_u32 {sHE}, {sHE}, s3
    s_lshl_b32 {sPx}, {sT32}, 11
    s_lshl_b32 s3, {sM}, 7
    s_add_u32 {sF32}, {sPx}, s3
    s_lshl_b32 s14, {sT64}, 2
    s_add_u32 s14, s14, {sWAVE}
    s_lshl_b32 {sF16}, s14, 10
    s_lshl_b32 s3, {sCG}, 7
    s_add_u32 {sF16}, {sF16}, s3
    s_mul_i32 {sOf}, s14, {16 * 1280}
    s_mul_i32 s3, {sCG}, 160
    s_add_u32 {sOf}, {sOf}, s3
    s_lshl_b32 {sPo}, {sT64}, 12
    s_lshl_b32 s3, {sWAVE}, 9
    s_add_u32 {sPo}, {sPo}, s3
    s_lshr_b32 s15, s14, 1
    s_and_b32 s14, s14, 1
    s_lshl_b32 s14, s14, 8
    s_mul_i32 {sXs}, s15, 40960
    s_mul_i32 s3, {sCG}, 5120
    s_add_u32 {sXs}, {sXs}, s3
    s_add_u32 {sXs}, {sXs}, s14
    s_lshl_b32 {sSTs}, s15, 11
    s_add_u32 {sSTs}, {sSTs}, s14
    s_lshr_b32 s3, {sCG}, 1
    s_lshl_b32 s3, s3, 9
    s_add_u32 {sSTs}, {sSTs}, s3
    s_and_b32 s3, {sCG}, 1
    s_lshl_b32 s3, s3, 3
    s_add_u32 {sSTs}, {sSTs}, s3
    s_mul_i32 {sAo}, {sCG}, {WOG}
    s_mul_i32 s3, {sWAVE}, 25600
    s_add_u32 {sAo}, {sAo}, s3
    s_add_u32 {sAo}, {sAo}, {WOF}
    s_mul_i32 {sAd}, {sCG}, {WDG}
    s_mul_i32 s3, {sWAVE}, {14 * 5120}
    s_add_u32 {sAd}, {sAd}, s3
    s_add_u32 {sAd}, {sAd}, {WDF}''')
    for i in range(4):
        c(f'''s_add_u32 s3, {sWAVE}, {i + 1}
        s_and_b32 s3, s3, 3
        s_lshl_b32 s14, {sT64}, 2
        s_add_u32 s3, s3, s14
        s_mul_i32 {sBo[i]}, s3, 20480
        s_mul_i32 s14, {sWAVE}, 5120
        s_add_u32 {sBo[i]}, {sBo[i]}, s14
        s_add_u32 {sBo[i]}, {sBo[i]}, {OO}
        s_mul_i32 {sBh[i]}, s3, {NKH * 1024}
        s_mul_i32 s14, {sWAVE}, {14 * 1024}
        s_add_u32 {sBh[i]}, {sBh[i]}, s14
        s_add_u32 {sBh[i]}, {sBh[i]}, {HH}''')
    c(f's_add_u32 s3, {sXs}, {XIN}')
    for tt in range(5):
        if tt == 4: c('s_addk_i32 s3, 4096')
        c(f'buffer_load_dwordx2 {res[2 * tt:2 * tt + 2]}, {vXa}, {sLS}, s3 offen offset:{(tt % 4) * 1024}', tag='res')
    for cc in part(PART2, 1): c.add(cc)

def p1(c):
    V = Alloc('v', V0, 256)
    mk(c)
    pre = Code(); pre.wait_vm(['w1p1', 'res']); pre('s_barrier')
    red = stats(c, V, STIN)
    acc = [V.get(16, 4) for _ in range(4)]
    bx = V.get(4, 4); vvar = V.get(); vs2 = V.get(2, 2); vs = vs2[0]; vrs = vs2[1]
    st = Code(); red(st, bx, vvar)
    st(f'v_rsq_f32 {vrs}, {vvar}\ns_nop 0\nv_mul_f32 {vs}, {fbits(LOG2E)}, {vrs}')
    vIw, vA, vB, vCw, vCp, vKV, vO, vO2 = (V.get() for _ in range(8)); vF = V.get(2); ID = V.get(4, 4)
    t = V.get(6, 2)
    ad = Code()
    ad(f'''v_lshrrev_b32 {t[0]}, 5, v0                 ; half
    v_and_b32 {t[1]}, 31, v0
    s_lshl_b32 s3, {sWAVE}, 5
    v_add_u32 {t[2]}, s3, {t[1]}
    v_mul_u32_u24 {t[2]}, 144, {t[2]}
    v_mul_u32_u24 {t[3]}, 18432, {t[0]}
    v_add_u32 {t[2]}, {IMG}, {t[2]}
    v_add_u32 {vIw}, {t[2]}, {t[3]}
    v_bfe_u32 {t[2]}, v0, 2, 2
    v_lshlrev_b32 {t[2]}, 1, {t[2]}
    v_add_u32 {t[2]}, {t[2]}, {t[0]}
    v_mul_u32_u24 {t[2]}, 288, {t[2]}           ; (2 half + 4 r) * 144
    s_lshr_b32 s14, {sWAVE}, 1
    s_mul_i32 s3, s14, 18432
    s_add_u32 s3, s3, {IMG}
    v_add_u32 {t[2]}, s3, {t[2]}
    v_bfe_u32 {t[3]}, v0, 4, 1
    v_and_b32 {t[4]}, 3, v0
    v_lshl_add_u32 {t[3]}, {t[3]}, 2, {t[4]}
    v_min_u32 {t[4]}, 4, {t[3]}
    v_min_u32 {t[3]}, 5, {t[3]}
    v_lshl_add_u32 {vA}, {t[4]}, 3, {t[2]}
    v_lshl_add_u32 {vB}, {t[3]}, 3, {t[2]}
    s_and_b32 s15, {sWAVE}, 1
    s_mul_i32 s15, s15, 40
    v_add_u32 {vA}, s15, {vA}
    v_add_u32 {vB}, 80, {vB}
    s_mul_i32 s3, s14, {21 * 80}
    s_add_u32 s3, s3, s15
    s_add_u32 s3, s3, {CMP}
    v_mul_u32_u24 {t[2]}, 80, {t[1]}
    v_lshl_add_u32 {t[2]}, {t[0]}, 3, {t[2]}
    v_add_u32 {vCw}, s3, {t[2]}
    v_add_u32 {vKV}, s25, {vL}
    v_add_u32 {vCp}, {CMP}, {vKV}
    v_mov_b32 {t[2]}, {OOB}
    v_cmp_gt_u32 vcc, 3360, {vKV}
    v_cndmask_b32 {vKV}, {t[2]}, {vKV}, vcc
    v_bfe_u32 {t[2]}, v0, 2, 1
    v_cmp_eq_u32 s[64:65], {t[2]}, {t[0]}
    v_lshrrev_b32 {t[2]}, 3, {t[1]}
    v_and_b32 {t[3]}, 3, v0
    v_lshl_add_u32 {t[2]}, {t[2]}, 2, {t[3]}
    v_mul_u32_u24 {t[3]}, 21, {t[0]}
    v_add_u32 {t[3]}, {t[3]}, {t[2]}
    v_mul_u32_u24 {t[3]}, 80, {t[3]}
    v_add_u32 {t[3]}, {CMP}, {t[3]}
    v_mov_b32 {t[4]}, {CMP + 3360}
    v_cndmask_b32 {vF[0]}, {t[4]}, {t[3]}, s[64:65]
    v_add_u32 {t[3]}, {16 * 80}, {vF[0]}
    v_cmp_gt_u32 vcc, 5, {t[2]}
    s_and_b64 vcc, vcc, s[64:65]
    v_cndmask_b32 {vF[1]}, {t[4]}, {t[3]}, vcc
    v_and_b32 {t[3]}, 1, {t[2]}
    v_lshlrev_b32 {t[3]}, 4, {t[3]}
    v_mov_b32 {t[4]}, 0x3f80
    v_lshlrev_b32 {t[3]}, {t[3]}, {t[4]}
    v_cndmask_b32 {t[3]}, 0, {t[3]}, s[64:65]
    v_lshrrev_b32 {t[2]}, 1, {t[2]}''')
    for j in range(4): ad(f'v_cmp_eq_u32 vcc, {j}, {t[2]}\nv_cndmask_b32 {ID[j]}, 0, {t[3]}, vcc')
    ad(f'''v_bfe_u32 {t[2]}, v0, 4, 1
    v_mul_u32_u24 {t[2]}, 20480, {t[2]}
    v_and_b32 {t[3]}, 15, v0
    v_lshl_add_u32 {t[2]}, {t[3]}, 4, {t[2]}
    v_lshl_add_u32 {vO}, {t[0]}, 9, {t[2]}
    v_lshl_add_u32 {vO2}, {t[0]}, 3, {t[2]}''')
    ep = V.get(20, 2); PK = V.get(32, 4)
    kv_ = [acc[0][i] for i in range(16)] + [acc[1][i] for i in range(4)]
    vv = [acc[1][i] for i in range(4, 16)] + [acc[2][i] for i in range(8)]
    qp = [acc[2][i:i + 2] for i in range(8, 16, 2)] + [acc[3][i:i + 2] for i in range(0, 12, 2)]
    sk = softmax_k(kv_, ep, PK, vs, t)
    for j in range(5): sk(f'ds_write_b128 {vIw}, {PK[4 * j:4 * j + 4]} offset:{16 * j}', tag='needfree')
    sv = Code()
    for i in range(0, 20, 4):
        for k in range(i, i + 4): sv(f'v_mul_f32 {vv[k]}, {vv[k]}, {vrs}')
        sv(f'v_cvt_pk_bf16_f32 {PK[20 + i // 2]}, {vv[i]}, {vv[i + 1]}\nv_cvt_pk_bf16_f32 {PK[21 + i // 2]}, {vv[i + 2]}, {vv[i + 3]}')
    sv(f'v_mov_b32 {PK[30]}, 0x3f80\nv_mov_b32 {PK[31]}, 0')
    for j in range(5, 8): sv(f'ds_write_b128 {vIw}, {PK[4 * j:4 * j + 4]} offset:{16 * j}', tag='needfree')
    steps = stream_order(4, P1_NA); N = len(steps); nA = 41 * P1_NA
    side = [(12, st.items), (20, ad.items), (nA + 2, sk.items), (nA + 41 + 2, sv.items)]
    wo = wloads(woF, sAo, 0, 25)
    extra = [(Opt.WO0 + Opt.WOS * k, wo[k]) for k in range(16)] + [(nA + 41 + 2 + 3 * k, wo[16 + k]) for k in range(9)]
    hooks = {nA - 1: Code()}; mk(hooks[nA - 1])
    chunks = [(0, 100, 'res'), (100, 60, 'w1p2'), (160, 4, 'dma')]
    left, ex = stream_gemm(c, steps, acc, lambda ks: xf[ks] if ks < 40 else bx, xloader(XIN), abuf, vLds, vL, B1, sW1, 160,
                           chunks, side, sD=sD, hooks=hooks, extra=extra, name='w1', pre=pre)
    print('p1 left', len(left), len(ex)); [c.add(e) for e in ex]
    mk(c)
    c.wait_lg('needfree'); c('s_barrier')
    KVa = acc[0]; fa, fb = TT[0:8], TT[8:16]
    def rd(k):
        for rr in range(2):
            c(f'ds_read_b64_tr_b16 {fa[k][2 * rr:2 * rr + 2]}, {vA} offset:{2304 * k + 144 * rr}')
            c(f'ds_read_b64_tr_b16 {fb[k][2 * rr:2 * rr + 2]}, {vB} offset:{2304 * k + 144 * rr}')
    for k in range(3): rd(k)
    for k in range(8):
        c(f'v_mfma_f32_32x32x16_bf16 {KVa}, {fa[k]}, {fb[k]}, {KVa if k else 0}')
        if k + 3 < 8: rd(k + 3)
    sq = softmax_q(qp, ep, PK, vs2, t).items
    c.add(sq[:12]); sq = sq[12:]
    kp = V.get(6, 2)
    for j in range(6): c(f'v_cvt_pk_bf16_f32 {kp[j]}, {KVa[2 * j]}, {KVa[2 * j + 1]}')
    c('s_mov_b32 exec_lo, 0x1fffff\ns_mov_b32 exec_hi, 0x1fffff')
    c(f'ds_write_b64 {vCw}, {kp[0:2]}\nds_write_b64 {vCw}, {kp[2:4]} offset:16\ns_mov_b32 exec_hi, 0\nds_write_b64 {vCw}, {kp[4:6]} offset:32', tag='cmp')
    c('s_mov_b64 exec, -1'); c.add(sq[:10]); sq = sq[10:]
    c.wait_lg('cmp'); c('s_barrier')
    pc = V.get(4, 4)
    c(f'ds_read_b128 {pc}, {vCp}'); c.add(sq[:20]); sq = sq[20:]
    c(f'buffer_store_dwordx4 {pc}, {vKV}, {sLS}, {sKVs} offen sc1')
    mk(c)
    w3 = part(PART1, 3); n1 = Opt.W3A
    step = max(1, len(sq) // (n1 + 1))
    for k in range(n1): c.add(w3[k]); c.add(sq[:step]); sq = sq[step:]
    c.add(sq)
    mk(c)
    SUM = acc[0]
    c(f's_mov_b32 {sCnt}, 4096\nP1_RETRY:\ns_mov_b32 s3, {sKVl}')
    for p in range(16): c(f'buffer_load_dwordx4 {TT[p]}, {vKV}, {sLS}, s3 offen sc1\ns_addk_i32 s3, 4096')
    for p in range(16): c(f'v_mfma_f32_32x32x16_bf16 {SUM}, {ID}, {TT[p]}, {SUM if p else 0}')
    c(f'''v_cmp_u_f32 vcc, {SUM[0]}, {SUM[0]}
    s_sub_u32 {sCnt}, {sCnt}, 1
    s_cselect_b64 s[64:65], 0, -1
    s_and_b64 vcc, vcc, s[64:65]
    s_cbranch_vccnz P1_RETRY''')
    mk(c)
    for j in range(4): c(f'v_cvt_pk_bf16_f32 {pc[j]}, {SUM[2 * j]}, {SUM[2 * j + 1]}')
    c(f'ds_write_b128 {vCp}, {pc}', tag='cmp2'); c.wait_lg('cmp2'); c('s_barrier')
    for k in range(5):
        for tt in range(2): c(f'ds_read_b128 {TT[2 * k + tt]}, {vF[tt]} offset:{16 * k}')
    O0, O1 = acc[0], acc[1]
    for k in range(5):
        for tt, d in ((1, O1), (0, O0)):
            c(f'v_mfma_f32_32x32x16_bf16 {d}, {TT[2 * k + tt]}, {PK[4 * k:4 * k + 4]}, {d if k else 0}')
    c(f'''s_barrier
    v_mul_f32 {t[2]}, {fbits(1e-6)}, {t[2]}
    v_add_f32 {t[2]}, {t[2]}, {O1[4]}
    v_rcp_f32 {t[2]}, {t[2]}''')
    prs = [O1[0:2], O1[2:4]] + [O0[i:i + 2] for i in range(0, 16, 2)]
    dsts = [PK[8], PK[9]] + [PK[i] for i in range(8)]
    for p_ in prs: c(f'v_pk_mul_f32 {p_}, {p_}, {t[2:4]} op_sel:[0,0] op_sel_hi:[1,0]')
    for p_, d in zip(prs, dsts): c(f'v_cvt_pk_bf16_f32 {d}, {p_[0]}, {p_[1]}')
    c(f'''buffer_store_dwordx2 {PK[8:10]}, {vO2}, {sLS}, {sO2} offen {SC}
    buffer_store_dwordx4 {PK[0:4]}, {vO}, {sLS}, {sO1} offen {SC}
    buffer_store_dwordx4 {PK[4:8]}, {vO}, {sLS}, {sO1} offen offset:256 {SC}''', tag='ost')
    mk(c)
    publish(c, 'ost', sF32, FO)
    for cc in w3[n1:]: c.add(cc)

def p24(c, name, seq, nacc, af, bb, sBs, RED, pre_issued, extra, hooks, LA):
    V = Alloc('v', V0, 160)
    acc = [V.get(20, 4) for _ in range(nacc)]; accof = lambda i: acc[i % nacc]
    tot = V.get(20, 4); t0 = V.get(); t1 = V.get(); vW = V.get(3); vR = V.get()
    NBB = len(bb); so = Soff(sB)
    ops = []
    for n, (i, k) in enumerate(seq):
        cc = Code(); o = so.at(cc, sBs[i], k)
        cc(f'buffer_load_dwordx4 {bb[n % NBB]}, {vL}, {sLS}, {o} {SC}')
        ops.append((n * 5, cc, max(0, (n - NBB + 1) * 5)))
    N = len(seq) * 5
    last = {i: max(n for n, s_ in enumerate(seq) if s_[0] == i) for i in range(4)}
    pre = Code()
    for i in range(3):
        pre(f'''s_add_u32 s3, {sWAVE}, {i + 1}
        s_and_b32 s3, s3, 3
        s_mul_i32 s3, s3, 15360
        s_add_u32 s3, s3, {RED + i * 5120}
        v_add_u32 {vW[i]}, s3, {vL}''')
    pre(f's_mul_i32 s3, {sWAVE}, 15360\ns_add_u32 s3, s3, {RED}\nv_add_u32 {vR}, s3, {vL}')
    for r_ in range(10): pre(f'v_lshlrev_b32 {tot[2 * r_]}, 16, {res[r_]}\nv_and_b32 {tot[2 * r_ + 1]}, 0xffff0000, {res[r_]}')
    side = []
    for i in range(3):
        e = Code()
        for t in range(5): e(f'ds_write_b128 {vW[i]}, {accof(i)[4 * t:4 * t + 4]} offset:{t * 1024}', tag='red')
        side.append(((last[i] + 1) * 5 + 3, e.items))
    pa = [a for a in acc if a is not accof(3)]
    if len(pa) < 2: pa.append(V.get(20, 4))
    e = Code(); e.wait_lg('red'); e('s_barrier')
    for sl in range(3):
        for t in range(5): e(f'ds_read_b128 {pa[sl & 1][4 * t:4 * t + 4]}, {vR} offset:{sl * 5120 + t * 1024}', tag='redr')
        if sl:
            for r_ in range(20): e(f'v_add_f32 {tot[r_]}, {tot[r_]}, {pa[(sl - 1) & 1][r_]}')
    for r_ in range(20): e(f'v_add_f32 {tot[r_]}, {tot[r_]}, {pa[0][r_]}')
    side.append(((last[2] + 1) * 5 + 3 + Opt.P4_BARDELAY, e.items))
    issued = 0; gate = {}
    def try_issue(p, burst):
        nonlocal issued
        n = 0; cy = 0
        while issued < len(ops):
            need, cc, after = ops[issued]
            force = need <= p + 1
            if not force:
                if n >= burst: break
                if sum(1 for o in ops[:issued] if o[0] > p) >= LA: break
            if after > p + 1 or gate.get(issued, -9) > p:
                assert not force; break
            c.add(cc); issued += 1; n += 1; cy += sum(cost(x) for x in cc.items)
        return cy
    def run():
        nonlocal side
        c.add(pre)
        side = [(a, list(it)) for a, it in side]; ex = list(extra); first = set(); nred = 0
        for p in range(N):
            (i, k), t = seq[p // 5], p % 5
            d = accof(i)[4 * t:4 * t + 4]
            c(f'v_mfma_f32_16x16x32_bf16 {d}, {af[k * 5 + t]}, {bb[(p // 5) % NBB]}, {d if (i, t) in first else 0}')
            if (i, t) not in first and i >= nacc: assert nred >= 5 * (i - nacc + 1), 'accumulators reused too early'
            first.add((i, t))
            if p in hooks: c.add(hooks[p])
            cy = try_issue(p, 1)
            if not cy and ex and ex[0][0] <= p:
                cc = ex.pop(0)[1]; c.add(cc); cy += sum(cost(x) for x in cc.items)
            while side and p >= side[0][0]:
                it = side[0][1]
                if not it: side.pop(0); continue
                if cy and cy + cost(it[0]) > 8.5: break
                nred += getattr(it[0], 'tag', None) == 'red'
                cy += cost(it[0]); c.add(it.pop(0))
        left = [x for a, it in side for x in it]
        print(name, 'left', len(left), len(ex)); c.add(left)
        mk(c)
        fin = accof(3)
        for r_ in range(0, 20, 2): c(f'v_pk_add_f32 {tot[r_:r_ + 2]}, {tot[r_:r_ + 2]}, {fin[r_:r_ + 2]}')
        for r_ in range(10): c(f'v_cvt_pk_bf16_f32 {res[r_]}, {tot[2 * r_]}, {tot[2 * r_ + 1]}')
        Q = [V.get(4, 4), V.get(4, 4)]
        for r_ in range(8): c(f'v_mov_b32 {Q[r_ // 4][r_ % 4]}, {res[r_]}')
        for q in Q: c(f'v_permlane32_swap_b32 {q[0]}, {q[2]}\nv_permlane32_swap_b32 {q[1]}, {q[3]}')
        return Q, V, [e_[1] for e_ in ex]
    return try_issue, run, gate

def store_x(c, Q, V, xbase, stbase, fbase):
    s0, s1 = V.get(2, 2), V.get(2, 2)
    c(f'''s_add_u32 s3, {sXs}, {xbase}
    buffer_store_dwordx4 {Q[0]}, {vS}, {sLS}, s3 offen {SC}
    buffer_store_dwordx4 {Q[1]}, {vS}, {sLS}, s3 offen offset:2048 {SC}
    s_addk_i32 s3, 4096
    buffer_store_dwordx2 {res[8:10]}, {vXa}, {sLS}, s3 offen {SC}''')
    c(f's_mov_b32 s3, 0x3f803f80\nv_mov_b32 {s0[0]}, 0\nv_mov_b32 {s0[1]}, 0')
    for r_ in range(10): c(f'v_dot2_f32_bf16 {s0[0]}, {res[r_]}, s3, {s0[0]}\nv_dot2_f32_bf16 {s0[1]}, {res[r_]}, {res[r_]}, {s0[1]}')
    for sw in ('v_permlane16_swap_b32', 'v_permlane32_swap_b32'):
        c(f'''v_mov_b32 {s1[0]}, {s0[0]}
        v_mov_b32 {s1[1]}, {s0[1]}
        {sw} {s0[0]}, {s1[0]}
        {sw} {s0[1]}, {s1[1]}
        v_add_f32 {s0[0]}, {s0[0]}, {s1[0]}
        v_add_f32 {s0[1]}, {s0[1]}, {s1[1]}''')
    c(f's_add_u32 s3, {sSTs}, {stbase}\ns_mov_b64 exec, 0xffff')
    c(f'buffer_store_dwordx2 {s0}, {vL}, {sLS}, s3 offen {SC}', tag='xst')
    c('s_mov_b64 exec, -1')
    mk(c)
    c('s_barrier')
    publish(c, 'xst', sF16, fbase)

def p2(c):
    poll_issue(c, vPo, sPo, FO, '0xff'); poll_check(c, vPo, '0xff', 'PO')
    mk(c)
    seq = [(i, k) for i in range(4) for k in range(5)]
    wd = wloads(wdF, sAd, 0, Opt.WD2)
    extra = [(Opt.WD2S + 4 * k, w) for k, w in enumerate(wd)]
    ti, run, _ = p24(c, 'P2', seq, 2, woF, bb2, sBo, RED2, 0, extra, {}, 20)
    ti(-1, Opt.P2_LA0)
    Q, V, ex = run()
    for e in ex: c.add(e)
    store_x(c, Q, V, XM, STM, FXM)
    for cc in part(PART2, 3): c.add(cc)

def p3(c, p4_start):
    V = Alloc('v', V0, 160)
    poll_issue(c, vPx, sPx, FXM, '0xffff'); poll_check(c, vPx, '0xffff', 'PXM')
    mk(c)
    pre = Code(); pre.wait_vm('w3p1'); pre('s_barrier')
    red = stats(c, V, STM)
    acc = [V.get(16, 4) for _ in range(7)]
    bx = V.get(4, 4); vvar = V.get(); va = V.get(); vb = V.get()
    st = Code(); red(st, bx, vvar)
    K = -2.0 * math.sqrt(2.0 / math.pi) * LOG2E
    st(f'''v_rsq_f32 {vb}, {vvar}
    s_nop 0
    v_mul_f32 {va}, {fbits(K)}, {vb}
    v_mul_f32 {vb}, {vb}, {vb}
    v_mul_f32 {vb}, {fbits(0.044715)}, {vb}
    v_mul_f32 {vb}, {va}, {vb}''')
    tmp = V.get(4, 4); hp = [V.get(4, 4), V.get(4, 4)]
    def epi(j):
        e = Code(); a = acc[j]; h = hp[j & 1]
        for p in range(0, 8, 4):
            G = [a[p + i] for i in range(4)]; U = [a[8 + p + i] for i in range(4)]; t = tmp
            for i in range(4): e(f'v_mul_f32 {t[i]}, {G[i]}, {G[i]}')
            for i in range(4): e(f'v_fma_f32 {t[i]}, {t[i]}, {vb}, {va}')
            for i in range(4): e(f'v_mul_f32 {t[i]}, {t[i]}, {G[i]}')
            for i in range(4): e(f'v_exp_f32 {t[i]}, {t[i]}\nv_mul_f32 {U[i]}, {G[i]}, {U[i]}')
            for i in range(4): e(f'v_fma_f32 {t[i]}, {t[i]}, {vvar}, {vvar}')
            for i in range(4): e(f'v_rcp_f32 {t[i]}, {t[i]}')
            for i in range(4): e(f'v_mul_f32 {U[i]}, {U[i]}, {t[i]}')
            for i in range(0, 4, 2): e(f'v_cvt_pk_bf16_f32 {h[(p + i) // 2]}, {U[i]}, {U[i + 1]}')
        so, o = (sHE, j) if j < NEARLY else (sHL, j - NEARLY)
        e(f'buffer_store_dwordx4 {h}, {vH}, {sLS}, {so} offen offset:{o * 512} {SC}', tag='he' if j < NEARLY else 'hl')
        return e.items
    steps = stream_order(7, P3_NA); N = len(steps); nA = 41 * P3_NA
    side = [(12, st.items)]
    for j in range(6):
        ready = (nA if j < P3_NA else nA + (j - P3_NA + 1) * 41) + 2
        e = epi(j)
        if j == NEARLY:
            pubE = Code(); publish(pubE, 'he', sF32, FHE)
            e = e[:Opt.PUBE] + [Group(pubE)] + e[Opt.PUBE:]
        side.append((ready, e))
    wd = wloads(wdF, sAd, Opt.WD2, 70); n2 = 40 - Opt.WD2
    extra = [(Opt.WD3A + Opt.WD3S * k, wd[k]) for k in range(n2)]
    extra += [(N - 41 + k + 1, wd[n2 + k]) for k in range(30)]
    hooks = {nA - 1: Code()}; mk(hooks[nA - 1])
    chunks = [(0, 100, 'res'), (100, 60, 'w3p2'), (160, 32, 'dma'), (192, 32, 'dma'), (224, 32, 'dma'), (256, 32, 'dma')]
    left, ex = stream_gemm(c, steps, acc, lambda ks: xf[ks] if ks < 40 else bx, xloader(XM), abuf, vLds, vL, B3, sW3, 160,
                           chunks, side, sD=sD, off=OFF3, hooks=hooks, extra=extra, name='w3', pre=pre)
    print('p3 left', len(left), len(ex))
    mk(c)
    poll_issue(c, vPo, sPo, FHE, '0xff')
    c('s_barrier')
    for e in ex: c.add(e)
    e6 = epi(6); h = len(e6) // 2
    c.add(e6[:h])
    poll_check(c, vPo, '0xff', 'PHE')
    p4_start()
    c.add(e6[h:])
    mk(c)

def p4(c):
    ne = 2 * NEARLY
    seq = [(i, k) for i in range(3) for k in range(ne)] + [(i, k) for i in range(3) for k in range(ne, 14)] + [(3, k) for k in range(14)]
    pubL = Code(); publish(pubL, 'hl', sF32, FHL)
    pi = Code(); poll_issue(pi, vPo, sPo, FHL, '0xff')
    pk = Code(); poll_check(pk, vPo, '0xff', 'PHL')
    hooks = {Opt.PUBL: pubL, Opt.PLI: pi, Opt.PLC: pk}
    w1 = part(PART1, 1)
    extra = [(Opt.W1S + Opt.W1D * k, w) for k, w in enumerate(w1)]
    ti, run, gate = p24(c, 'P4', seq, 3, wdF, bb4, sBh, RED4, 0, extra, hooks, Opt.P4_LA)
    gate[3 * ne] = Opt.PLC
    def rest():
        Q, V, ex = run()
        c(f's_cmp_lg_u32 {sLAY}, 0\ns_cbranch_scc1 M_FINAL')
        for e in ex: c.add(e)
        store_x(c, Q, V, LSTR + XIN, LSTR + STIN, LSTR + FXIN)
        for cc in part(PART2, 1): c.add(cc)
        return Q, V
    return (lambda: ti(-1, Opt.P4_LA0)), rest

def main_body():
    global slow
    slow = Code()
    c = Code()
    c('M_BODY:')
    prolog(c)
    c('M_LAYER:')
    p1(c)
    c(f's_cmp_lg_u32 {sLAY}, 0\ns_cselect_b32 s74, 0, s74')
    p2(c)
    start4, rest4 = p4(c)
    p3(c, start4)
    Q, V = rest4()
    c(f'''s_add_u32 s16, s16, {LSTR}
    s_addc_u32 s17, s17, 0
    s_mov_b32 {sLAY}, 1''')
    poll_issue(c, vPx, sPx, FXIN, '0xffff'); poll_check(c, vPx, '0xffff', 'PXI')
    c('s_waitcnt vmcnt(0)\ns_branch M_LAYER')
    c.add(Reset())
    t0, t1 = V.get(), V.get()
    c(f'''M_FINAL:
    v_and_b32 {t0}, 15, v0
    v_mul_u32_u24 {t0}, 1280, {t0}
    v_bfe_u32 {t1}, v0, 4, 1
    v_lshl_add_u32 {t0}, {t1}, 4, {t0}
    v_lshrrev_b32 {t1}, 5, v0
    v_lshl_add_u32 {vS}, {t1}, 5, {t0}
    v_lshl_add_u32 {vXa}, {t1}, 3, {t0}
    buffer_store_dwordx4 {Q[0]}, {vS}, {sOUT}, {sOf} offen
    buffer_store_dwordx4 {Q[1]}, {vS}, {sOUT}, {sOf} offen offset:64
    buffer_store_dwordx2 {res[8:10]}, {vXa}, {sOUT}, {sOf} offen offset:128''')
    if Opt.stamps:
        mk(c)
        c(f'''s_lshl_b32 s3, s13, 2
        s_add_u32 s3, s3, {sWAVE}
        s_lshl_b32 s3, s3, 9
        s_add_u32 s3, s3, {STAMP}
        v_lshlrev_b32 v24, 2, v0
        buffer_store_dword v22, v24, {sWS}, s3 offen
        buffer_store_dword v23, v24, {sWS}, s3 offen offset:256''')
    c('M_END:\ns_endpgm')
    c.add(slow)
    return c
```

```python
S, D, H, DH, F = 2048, 640, 32, 20, 1728
_cur = 0
def _al(n, a=65536):
    global _cur
    o = _cur; _cur = (_cur + n + a - 1) // a * a
    return o
XB = 64 * 40 * 1024
NKH = 56
FLB = 1024 * 128
XIN = _al(XB); STIN = _al(64 * 2048); OO = _al(128 * 20 * 1024); KV = _al(256 * 4096)
XM = _al(XB); STM = _al(64 * 2048); HH = _al(128 * NKH * 1024)
FL0 = _al(5 * FLB)
FXIN, FO, FXM, FHE, FHL = (FL0 + i * FLB for i in range(5))
LSTR = _cur
_cur = 2 * LSTR
X = [XIN, XM, LSTR + XIN, LSTR + XM]
ST = [STIN, STM, LSTR + STIN, LSTR + STM]
O = [OO, LSTR + OO]; HB = [HH, LSTR + HH]; KVP = [KV, LSTR + KV]
W1G = 164 * 1024
W1F = _al(16 * W1G)
WOG = 100 * 1024
WOF = _al(8 * WOG)
W3G = 287 * 1024
W3F = _al(16 * W3G + 4096)
WDG = NKH * 5 * 1024
WDF = _al(8 * WDG)
TICK = _al(8 * 128)
STAMP = _al(1 << 20)
WS_USED = _cur

P1_NA = 2
P3_NA = 3
def stream_order(ntiles, na):
    o = [(t, ks) for ks in range(41) for t in range(na)]
    o += [(t, ks) for t in range(na, ntiles) for ks in range(41)]
    return o
def stream_pos(t, ks, na):
    return ks * na + t if t < na else 41 * na + (t - na) * 41 + ks
NEARLY = 5
def h_slot(g4, j): return NEARLY * g4 + j if j < NEARLY else 4 * NEARLY + (7 - NEARLY) * g4 + (j - NEARLY)
SLOT2J = {h_slot(g4, j): 7 * g4 + j for g4 in range(4) for j in range(7)}
```

```python
import sys
from common import *
NAME = 'interleave_layers__linear_kernel_hedgehog__geglu_ffn__prompt'
def build(launches, stamps=False):
    Opt.stamps = stamps
    allk = {}
    bodies = {}
    def reg(name, params, body, fn, grid, lds, vg=256, ag=256):
        allk[name] = (params, body, fn, grid, lds, vg, ag)
    import main
    reg('main_kernel', {}, 'M_BODY', main.main_body, 256, 163840)
    try:
        import k0
        reg('k0_kernel', {'s77': 0}, 'K0_BODY', k0.k0_body, k0.NWG, k0.LDS, 256, 0)
    except ImportError: pass
    def nopfn():
        c = Code(); c('NOP_BODY:\ns_endpgm'); return c
    reg('nop_kernel', {}, 'NOP_BODY', nopfn, 256, 0, 256, 0)
    hdr = ''.join(f'; @launch kernel={n} grid=({allk[n][3]},1,1) block=(256,1,1) lds={allk[n][4]}\n' for n in launches)
    txt = '.amdgcn_target "amdgcn-amd-amdhsa--gfx950"\n.text\n'
    names = list(dict.fromkeys(launches))
    info = {}
    for n in names:
        params, body, fn, *_ = allk[n]
        txt += entry(n, params, body)
        if body not in bodies:
            t, items, nn = finalize(fn()); bodies[body] = t; info[body] = (len(items), nn)
            txt += '.p2align 6\n' + t
    txt += '.section .rodata,"a"\n'
    for n in names: txt += kd(n, allk[n][5], allk[n][6])
    return hdr + txt, info
FULL = ['k0_kernel', 'main_kernel']
if __name__ == '__main__':
    ls = sys.argv[2].split(',') if len(sys.argv) > 2 else FULL
    s, info = build(ls, stamps=len(sys.argv) > 3)
    open(sys.argv[1], 'w').write(s)
    print(info, len(s))
```
